```python
import torch

def _softmax(x, axis=-1):
    return torch.softmax(x, dim=axis)

def _gelu(x):
    return torch.nn.functional.gelu(x, approximate='tanh')

def _silu(x):
    return torch.nn.functional.silu(x)

def _sigmoid(x):
    return torch.sigmoid(x)

def _layernorm(x, axis=-1, eps=1e-05):
    m = x.mean(dim=axis, keepdim=True)
    v = x.var(dim=axis, keepdim=True, unbiased=False)
    return (x - m) / torch.sqrt(v + eps)

def _scatter_add(tgt, idx, src, axis=0):
    return tgt.clone().index_add_(axis, idx, src)

def _segment_sum(src, seg, n):
    out = torch.zeros((n,) + src.shape[1:], dtype=src.dtype)
    return out.index_add_(0, seg, src)

def _pad(x, pw):
    flat = tuple((v for pair in reversed(pw) for v in pair))
    return torch.nn.functional.pad(x, flat)
kernel_name = 'gated_mix__memory_aug_recurrent_mem_tr__sliding_local_dilated__prompt'

def setup_inputs():

    _w = lambda a: (lambda t: t.to(torch.bfloat16) if t.is_floating_point() else t)(torch.as_tensor(a))

    def _A_setup():
        B, S, Dm = (1, 2048, 512)
        H, Dh = (32, 128)
        M, seg = (8, 32)
        seg = min(seg, S)
        S = S // seg * seg
        return {'x': _w((lambda *s: torch.randn(*s, dtype=torch.bfloat16) * 0.05)(B, S, Dm)), 'mem0': _w((lambda *s: torch.randn(*s, dtype=torch.bfloat16) * 1.6)(B, M, Dm)), 'Wq': _w((lambda *s: torch.randn(*s, dtype=torch.bfloat16) * 0.8)(Dm, H, Dh) * Dm ** (-0.5)), 'Wk': _w((lambda *s: torch.randn(*s, dtype=torch.bfloat16) * 0.8)(Dm, H, Dh) * Dm ** (-0.5)), 'Wv': _w((lambda *s: torch.randn(*s, dtype=torch.bfloat16) * 1.6)(Dm, H, Dh) * Dm ** (-0.5)), 'Wo': _w((lambda *s: torch.randn(*s, dtype=torch.bfloat16) * 1.6)(H, Dh, Dm) * (H * Dh) ** (-0.5)), 'seg_len': seg}
    _A_in = _A_setup()

    def _B_setup():
        B, S, D = (1, 2048, 512)
        return {'x': _w((lambda *s: torch.randn(*s, dtype=torch.bfloat16) * 0.05)(B, S, D)), 'wqkv': _w((lambda *s: torch.randn(*s, dtype=torch.bfloat16) * 0.8)(D, 3 * D)), 'wo': _w((lambda *s: torch.randn(*s, dtype=torch.bfloat16) * 0.05)(D, D))}
    _B_in = _B_setup()
    return {'A_x': _A_in['x'], 'A_mem0': _A_in['mem0'], 'A_Wq': _A_in['Wq'], 'A_Wk': _A_in['Wk'], 'A_Wv': _A_in['Wv'], 'A_Wo': _A_in['Wo'], 'A_seg_len': _A_in['seg_len'], 'B_x': _B_in['x'], 'B_wqkv': _B_in['wqkv'], 'B_wo': _B_in['wo'], 'gate_w': _w((lambda *s: torch.randn(*s, dtype=torch.bfloat16) * 0.05)(512) * 16.0)}

def reference(A_x, A_mem0, A_Wq, A_Wk, A_Wv, A_Wo, A_seg_len, B_x, B_wqkv, B_wo, gate_w):

    def _A_ref(x, mem0, Wq, Wk, Wv, Wo, seg_len):
        B, S, Dm = x.shape
        H, Dh = (Wq.shape[1], Wq.shape[2])
        M = mem0.shape[1]
        scale = Dh ** (-0.5)
        n_seg = S // seg_len
        L = M + seg_len
        idx = torch.arange(L)
        mask = (idx[:, None] < M) | (idx[:, None] >= idx[None, :])
        mem = mem0
        outs = []
        for s in range(n_seg):
            xs = x[:, s * seg_len:(s + 1) * seg_len, :].clone()
            h = torch.concatenate([mem, xs], axis=1)
            q = torch.einsum('btd,dhe->bhte', h, Wq)
            k = torch.einsum('btd,dhe->bhte', h, Wk)
            v = torch.einsum('btd,dhe->bhte', h, Wv)
            scores = torch.einsum('bhqe,bhke->bhqk', q, k) * scale
            scores = torch.where(mask[None, None], scores, -1000000000.0)
            p = _softmax(scores, axis=-1)
            o = torch.einsum('bhqk,bhke->bhqe', p, v)
            o = torch.einsum('bhte,hed->btd', o, Wo)
            mem = o[:, :M, :].clone()
            outs.append(o[:, M:, :])
        return torch.concatenate(outs, axis=1)

    def _B_ref(x, wqkv, wo):
        B, S, D = x.shape
        H = 32
        Dh = D // H
        W, dil = (8, 2)
        qkv = (lambda x, *d: x.permute(*d))((x @ wqkv).reshape(B, S, 3, H, Dh), 2, 0, 3, 1, 4)
        q, k, v = (qkv[0], qkv[1], qkv[2])
        scale = Dh ** (-0.5)
        pos = torch.arange(S)
        off = torch.arange(W) * dil
        idx = pos[:, None] - off[None, :]
        mask = idx >= 0
        idx_c = torch.where(mask, idx, 0).reshape(-1)
        kg = k[:, :, idx_c, :].reshape(B, H, S, W, Dh)
        vg = v[:, :, idx_c, :].reshape(B, H, S, W, Dh)
        logits = torch.einsum('bhsd,bhswd->bhsw', q, kg) * scale
        logits = torch.where(mask[None, None, :, :], logits, -1000000000.0)
        attn = _softmax(logits, axis=-1)
        o = torch.einsum('bhsw,bhswd->bhsd', attn, vg)
        return (lambda x, *d: x.permute(*d))(o, 0, 2, 1, 3).reshape(B, S, D) @ wo
    x = A_x
    g = _sigmoid((x * gate_w).sum(-1, keepdims=True))
    a = _A_ref(x, A_mem0, A_Wq, A_Wk, A_Wv, A_Wo, A_seg_len)
    b = _B_ref(x, B_wqkv, B_wo)
    return g * a + (1 - g) * b
```

```python
from gen_core import *
import struct, math

RS = 2176
WS_P   = 0
WS_M   = 0x100000
WS_KX  = 0x200000
WS_VX  = WS_KX + (16 << 20)
WS_QX  = WS_VX + (16 << 20)
WS_KM  = WS_QX + (16 << 20)
WS_VM  = WS_KM + (8 << 20)
WS_END1 = WS_VM + (4 << 20)

L_WO = 0
L_MX = 131072
L_XQ = L_MX + 8192
L_OX = L_XQ + 16 * 272
L_KX = 146432
L_VX = L_KX + 8192
L_MISC = L_VX + 8192
LDS_TOTAL = 163840
assert L_OX + 8 * 272 <= L_KX and L_MISC + 64 <= LDS_TOTAL

KA = dict(x=0, mem0=8, Wq=16, Wk=24, Wv=32, Wo=40, seg=48, Bx=56, wqkv=64, wo=72, gate=80, out=88, dbg=96, ws=104)

SPIN_MAX = 400000
PSENT = 0x7F817F81
CSC = (128 ** -0.5) * math.log2(math.e)
def f32bits(x): return struct.unpack('<I', struct.pack('<f', x))[0]

NCH = 20
def chain_table():
    rows = []
    for w in range(4):
        for l in range(64):
            n = l & 15; g = l >> 4
            c = [0] * NCH
            c[0] = l * 16
            c[1] = L_WO + w * 4096 + l * 16
            c[2] = L_WO + 65536 + w * 4096 + l * 16
            c[3] = L_XQ + ((0 if w < 2 else 8) + 2 * g) * 272 + (8 * n + 4 * (w & 1)) * 2
            c[4] = L_XQ + (n & 7) * 272 + g * 16
            c[5] = L_XQ + (8 + 2 * (n >> 2) + (n & 1)) * 272 + g * 16
            c[6] = L_OX + (n & 7) * 272 + (w * 32 + (n >> 3) * 16 + 4 * g) * 2
            c[7] = L_OX + (n >> 1) * 272 + (g * 16 + (n & 1) * 8) * 2
            c[8] = (((2 * w + (n >> 3)) * 4 + 2 * ((n >> 2) & 1)) * 4 + g) * RS + (n & 3) * 16
            c[9] = (g >> 1) * 32 + (n & 3) * 8 + (g & 1) * 4
            c[10] = 0xEEEE if (n & 1) else 0x4444
            sel = [0] * 8; idx = 0
            r = n & 3
            for q in range(4):
                i0, i1 = 0, 1
                if r < 2:
                    s = 2 * (n >> 2) + r
                    if q in (s >> 2, 2 + (s >> 2)):
                        if (s & 3) == 3:
                            i0, i1 = 0, 3; sel[2 * q + 1] = 0x3F80
                        else:
                            i0, i1 = (s & 3), 3; sel[2 * q] = 0x3F80
                idx |= (i0 | (i1 << 2)) << (4 * q)
            c[11] = idx
            for q in range(4): c[12 + q] = sel[2 * q] | (sel[2 * q + 1] << 16)
            c[16] = (8 * (g & 1) + 4 * (g >> 1)) * 8192 + n * 16
            c[17] = (32 * (g & 1) + (g >> 1)) * 1024 + w * 256 + n * 16
            c[18] = (n >> 1) * 1024 + (32 * (g >> 1) + 16 * (n & 1) + 4 * (g & 1)) * 2
            rows.append(c)
    return rows

vL16, vWo, vWo2, vXw, vBq, vAk, vOw, vOr, vPst, vMst, vIdx, vSelI = range(12)
vSel = 12; vZ = 16
vAccV = 20; vS0 = 28; vS1 = 32; vSm = 36; vVX = 40; vQK = 48; vMA = 64; vKX = 96; vWV = 128
sWq, sWk, sWv, sWo, sMem0, sDbg, sWs = 4, 6, 8, 10, 12, 14, 16
sXcc, sHead, sWave, sR, sStep, sSpin = 20, 21, 22, 23, 24, 25
sPst0, sPst1, sPld, sMld, sMst, sMra = 26, 28, 30, 32, 34, 36
sKX, sVX, sKM, sVM = 38, 40, 42, 44
sHalf, sMex = 46, 48
sC, sT0, sT1, sT2, sT3 = 50, 51, 52, 53, 54
sJ = 56
sSRD = 60
sPra = 64
sSent = 66
sMode = 67
sTim = 70

WO_ORDER = [(0,0),(1,0),(0,1),(1,1),(2,0),(3,0),(2,1),(3,1),(4,0),(5,0),(4,1),(5,1),(6,0),(7,0),(6,1),(7,1)]
def smf(a, d, A, B, idx=vIdx):
    a.e(f'v_smfmac_f32_16x16x64_bf16 {vr(d,4)}, {vr(A,4)}, {B}, {vr(idx)}')
def wvB(u, t): return vr(vWV + (u * 2 + t) * 8, 8)

def gen_weight_load(a, hooks):
    LO8, LO1 = 16, 17
    SEL0, SEL1 = 18, 19
    TMP = [20, 24, 28]
    LANDOF = [32, 64, 96, 128, 160, 192, 224, 32, 64, 128, 160, 192, 96, 32, 64, 96]
    a.e(f'v_mov_b32 v{SEL0}, 0x05040100\nv_mov_b32 v{SEL1}, 0x07060302')
    units = [(mat, kbl, half) for mat in range(4) for kbl in range(2) for half in range(2)]
    def issue(ui):
        mat, kbl, half = units[ui]
        land = LANDOF[ui]
        if kbl == 0 and half == 0:
            base = [sWq, sWk, sWv, sWo][mat]
            a.e(f's_mov_b32 s{sSRD}, s{base}\ns_and_b32 s{sSRD+1}, s{base+1}, 0xffff\ns_mov_b32 s{sSRD+2}, {4<<20}\ns_mov_b32 s{sSRD+3}, 0x20000')
            if mat < 3: a.e(f's_lshl_b32 s{sT0}, s{sWave}, 20\ns_lshl_b32 s{sT1}, s{sHead}, 8\ns_add_u32 s{sPra}, s{sT0}, s{sT1}')
            else: a.e(f's_lshl_b32 s{sPra}, s{sHead}, 17')
        ub = (kbl * 64 + 32 * half) * 8192 if mat < 3 else (4 * kbl + 2 * half) * 1024
        sp = 16 * 8192 if mat < 3 else 64 * 1024
        for Dl in range(4):
            for jj in range(2):
                off = ub + (Dl & 1) * sp + (2 * ((Dl >> 1) & 1) + jj) * 8192
                a.e(f's_add_u32 s{sT1}, s{sPra}, {off}')
                r = land + (2 * Dl + jj) * 4
                a.e(f'buffer_load_dwordx4 {vr(r,4)}, v{LO8 if mat<3 else LO1}, {sr(sSRD,4)}, s{sT1} offen')
    cnt = [0]
    def process(ui):
        mat, kbl, half = units[ui]
        land = LANDOF[ui]
        for t in range(8):
            tq = TMP[cnt[0] % 3]; cnt[0] += 1
            c, o = t >> 1, t & 1
            for Dl in range(4):
                a.e(f'v_perm_b32 v{tq+Dl}, v{land+(2*Dl+1)*4+c}, v{land+(2*Dl)*4+c}, v{SEL1 if o else SEL0}')
            a.e(f'ds_write_b128 v{vWo if t<4 else vWo2}, {vr(tq,4)} offset:{(t&3)*16384+kbl*2048+half*1024}')
    def readback(mat):
        a.e('s_waitcnt lgkmcnt(0)')
        if mat < 2: a.e(f's_and_b32 s{sT2}, s{sWave}, 1\ns_lshl_b32 s{sT2}, s{sT2}, 16')
        else: a.e(f's_lshl_b32 s{sT2}, s{sWave}, 15')
        for j in range(4):
            a.e(f's_lshl_b32 s{sT1}, s{sJ+j}, 1\ns_add_u32 s{sT1}, s{sT1}, s{sT2}\nv_add_u32 v{20+j}, s{sT1}, v{vL16}')
        a.e('s_barrier')
        if mat < 2:
            lab = a.newlabel('rbskip')
            a.e(f's_lshr_b32 s{sT0}, s{sWave}, 1\ns_cmp_eq_u32 s{sT0}, {mat}\ns_cbranch_scc0 {lab}')
            for u in range(8):
                for t in range(4):
                    for half in range(2):
                        dst = (u*3+t)*8+half*4 if t < 3 else 192+u*8+half*4
                        a.e(f'ds_read_b128 {ar(dst,4)}, v{20+(u>>1)} offset:{t*16384+(u&1)*2048+half*1024}')
                a.e('s_waitcnt lgkmcnt(4)')
            a.label(lab)
        else:
            for u in range(8):
                for t in range(2):
                    for half in range(2):
                        a.e(f'ds_read_b128 {vr(vWV+(u*2+t)*8+half*4,4)}, v{20+(u>>1)} offset:{t*16384+(u&1)*2048+half*1024}')
                a.e('s_waitcnt lgkmcnt(4)')
        a.e('s_waitcnt lgkmcnt(0)\ns_barrier')
    DEPTH = 5
    issued = 0; extra = {}
    order = []
    def can_issue(k, done):
        prev = [j for j in range(k) if LANDOF[j] == LANDOF[k]]
        return (not prev or prev[-1] < done) and k - done < DEPTH + 1
    def note(n): order.extend([None] * n)
    for ui in range(16):
        while issued < 16 and can_issue(issued, ui):
            issue(issued); order.extend([issued] * 8); issued += 1
        last = max(i for i, x in enumerate(order) if x == ui)
        a.e(f's_waitcnt vmcnt({len(order)-1-last})')
        process(ui)
        if ui in hooks: note(hooks[ui](a))
        if ui % 4 == 3 and ui < 12:
            while issued < 16 and can_issue(issued, ui + 1):
                issue(issued); order.extend([issued] * 8); issued += 1
            readback(ui // 4)
            if ('rb', ui // 4) in hooks: note(hooks[('rb', ui // 4)](a))
    a.e('s_waitcnt lgkmcnt(0)')
    for i in range(8):
        T, kb = WO_ORDER[8 + i]
        for hf in range(2):
            a.e(f'ds_read_b128 {vr(32+i*8+hf*4,4)}, v{vWo2} offset:{(T-4)*16384+kb*2048+hf*1024}')
        if i % 4 == 3: a.e('s_waitcnt lgkmcnt(0)')
    for u in range(8):
        for hf in range(2):
            a.e(f'ds_write_b128 v{vWo2}, {ar(192+u*8+hf*4,4)} offset:{(u>>1)*16384+(u&1)*2048+hf*1024}')
        if u % 4 == 3: a.e('s_waitcnt lgkmcnt(0)')
    for i in range(64): a.e(f'v_accvgpr_write_b32 a{192+i}, v{32+i}')

def add64(a, d, s, off_sreg=None, imm=None):
    if off_sreg is not None:
        a.e(f's_add_u32 s{d}, s{s}, s{off_sreg}\ns_addc_u32 s{d+1}, s{s+1}, 0')
    else:
        a.e(f's_add_u32 s{d}, s{s}, {imm}\ns_addc_u32 s{d+1}, s{s+1}, 0')

def step_bases(a):
    a.e(f's_and_b32 s{sT0}, s{sStep}, 3\ns_lshl_b32 s{sT0}, s{sT0}, 13\ns_add_u32 s{sT0}, s{sT0}, s{sJ}\ns_add_u32 s{sT0}, s{sT0}, {WS_M}')
    add64(a, sMld, sWs, sT0)

def step_bases2(a, part):
    if part == 0:
        a.e(f's_lshl_b32 s{sT2}, s{sR}, 6\ns_add_u32 s{sT2}, s{sT2}, {WS_M}')
        a.e(f's_add_u32 s{sT0}, s{sStep}, 1\ns_and_b32 s{sT0}, s{sT0}, 3\ns_lshl_b32 s{sT0}, s{sT0}, 13\ns_add_u32 s{sT0}, s{sT0}, s{sT2}')
        add64(a, sMst, sWs, sT0)
        a.e(f's_add_u32 s{sT0}, s{sStep}, 2\ns_and_b32 s{sT0}, s{sT0}, 3\ns_lshl_b32 s{sT0}, s{sT0}, 13\ns_add_u32 s{sT0}, s{sT0}, s{sT2}')
        add64(a, sMra, sWs, sT0)
        return
    a.e(f's_and_b32 s{sT0}, s{sStep}, 1\ns_mul_i32 s{sT0}, s{sT0}, {128*RS}')
    a.e(f's_lshl_b32 s{sT1}, s{sHead}, 6\ns_add_u32 s{sT1}, s{sT1}, s{sT0}')
    add64(a, sPst0, sWs, sT1)
    add64(a, sPst1, sPst0, imm=4 * RS)
    a.e(f's_mul_i32 s{sT1}, s{sR}, {RS}\ns_add_u32 s{sT2}, s{sT1}, s{sT0}')
    add64(a, sPld, sWs, sT2)
    a.e(f's_lshr_b32 s{sSent}, s{sStep}, 1\ns_and_b32 s{sSent}, s{sSent}, 1\ns_xor_b32 s{sSent}, s{sSent}, 1')

class Cnt:
    def __init__(self, a, name, mx):
        self.a = a; self.name = name; self.mx = mx; self.q = []
    def issue(self, text, tag=None):
        self.a.e(text); self.q.append(tag)
    def wait(self, tag):
        idx = max(i for i, t in enumerate(self.q) if t == tag)
        n = len(self.q) - 1 - idx
        self.a.e(f's_waitcnt {self.name}({min(n, self.mx)})')
        if n <= self.mx: self.q = self.q[idx + 1:]
    def wait_all(self):
        self.a.e(f's_waitcnt {self.name}(0)'); self.q = []

aWO = 192
def qkB(u, t): return ar((u * 3 + t) * 8, 8)
vSA, vSB = 28, 40
sKMex = 98
sJM = 68

def gen_loop(a, st, tag, pubst='', opts=None):
    o = dict(ack1=1, ack2=0, stamps=0); o.update(opts or {})
    L = lambda x: f'{x}_{tag}'
    NST = 12
    NT = o.get('nt', 'nt')
    def stamp(k):
        if o['stamps']:
            a.e(f's_memtime s[{72+2*k}:{73+2*k}]')
    def stamp_collect():
        if o['stamps']:
            a.e('s_waitcnt lgkmcnt(0)')
            if o.get('raw'):
                lab = a.newlabel('noraw')
                a.e(f's_cmp_lg_u32 s{sStep}, {o["raw"]}\ns_cbranch_scc1 {lab}')
                a.e(f'v_mov_b32 v{vMA+28}, {L_MISC}\ns_lshl_b32 s{sT0}, s{sWave}, 6\nv_add_u32 v{vMA+28}, s{sT0}, v{vMA+28}\ns_mov_b64 exec, 1')
                for k in range(NST):
                    a.e(f'v_mov_b32 v{vMA+29}, s{72+2*k}\nds_write_b32 v{vMA+28}, v{vMA+29} offset:{64+4*k}')
                a.e('s_mov_b64 exec, -1\ns_waitcnt lgkmcnt(0)')
                a.label(lab)
                return
            for k in range(NST):
                prev = 96 if k == 0 else 72 + 2 * (k - 1)
                a.e(f's_sub_u32 s{73+2*k}, s{72+2*k}, s{prev}')
            a.e(f's_mov_b32 s96, s{72+2*(NST-1)}')
            a.e(f'v_mov_b32 v{vMA+28}, {L_MISC}\ns_lshl_b32 s{sT0}, s{sWave}, 6\nv_add_u32 v{vMA+28}, s{sT0}, v{vMA+28}\ns_mov_b64 exec, 1')
            for k in range(NST):
                a.e(f'v_mov_b32 v{vMA+29}, s{73+2*k}\nds_add_u32 v{vMA+28}, v{vMA+29} offset:{64+4*k}')
            a.e('s_mov_b64 exec, -1\ns_waitcnt lgkmcnt(0)')
    zero16 = lambda d: a.e(f'v_mfma_f32_32x32x16_bf16 {vr(d,16)}, {vr(vZ,4)}, {vr(vZ,4)}, 0')
    lg = Cnt(a, 'lgkmcnt', 15); vm = Cnt(a, 'vmcnt', 63)
    def p2loads():
        a.e(f'global_load_dwordx4 {vr(vMA,4)}, v{vL16}, {sr(sMld,2)} sc1\nglobal_load_dwordx4 {vr(vMA+4,4)}, v{vL16}, {sr(sMld,2)} offset:1024 sc1')
    def t3read(u):
        sl = vSA if u % 2 == 0 else vSB
        for hf in range(2):
            lg.issue(f'ds_read_b128 {vr(sl+4*hf,4)}, v{vWo2} offset:{(u>>1)*16384+(u&1)*2048+hf*1024}', ('t3', u))
    a.label(L('ENTRY'))
    a.label(L('STEP'))
    D2 = o.get('d2', 2); pos = o.get('p2pos', [5, 7]); gap = o.get('gap', 2)
    chunks = []
    chunks.append(lambda: (a.e(f's_mov_b32 s{sSpin}, 0'), t3read(0), t3read(1), zero16(vQK)))
    chunks.append(lambda: [a.e(f'v_mov_b32 v{vAccV+j}, 0') for j in range(8)] + [a.e(f'v_add_u32 v{vSm+j}, s{sJM+j}, v{vL16}') for j in range(4)])
    chunks.append(lambda: step_bases2(a, 0))
    chunks.append(lambda: step_bases2(a, 1))
    def lastchunk():
        a.e(f's_add_u32 s{sT0}, s{sJ}, {L_KX}\ns_mov_b32 m0, s{sT0}')
        if not o.get('nopf'): add64(a, sKX, sKX, imm=32 * 8192); add64(a, sVX, sVX, imm=32 * 8192)
    chunks.append(lastchunk)
    for g in range(gap): chunks.append(lambda: a.e('s_nop 15'))
    for i, ch in enumerate(chunks + [lambda: None]):
        for p in pos:
            if p == i: p2loads()
        ch()
    assert len(pos) == D2
    a.e(f's_waitcnt vmcnt({2*(D2-1)})')
    t0, t1 = vMA + 16, vMA + 17
    def p2check(lab):
        a.e(f'v_max3_u32 v{t0}, v{vMA}, v{vMA+1}, v{vMA+2}\nv_max3_u32 v{t1}, v{vMA+3}, v{vMA+4}, v{vMA+5}\nv_max3_u32 v{t0}, v{t0}, v{vMA+6}, v{vMA+7}')
        a.e(f'v_max_u32 v{t0}, v{t0}, v{t1}\nv_cmp_eq_u32 vcc, -1, v{t0}\ns_cbranch_vccnz {lab}')
    p2check(L("P2R"))
    a.label(L('P2OK'))
    lg.issue(f'ds_write_b128 v{vSm}, {vr(vMA,4)}', 'mxw'); lg.issue(f'ds_write_b128 v{vSm}, {vr(vMA+4,4)} offset:1024', 'mxw')
    stamp(3)
    def qk(u, t):
        if t < 3: smf(a, vQK + 4 * t, vMA + 4 * u, qkB(u, t))
        else:
            lg.wait(('t3', u)) if ('t3', u) in lg.q else None
            smf(a, vQK + 12, vMA + 4 * u, vr(vSA if u % 2 == 0 else vSB, 8))
    for t in range(4): qk(0, t)
    lg.wait_all(); a.e('s_barrier')
    stamp(4)
    for u in range(2, 8):
        lg.issue(f'ds_read_b128 {vr(vMA+4*u,4)}, v{vSm+(u>>1)} offset:{(u&1)*1024}', ('mx', u))
    t3read(2)
    for t in range(4): qk(1, t)
    t3read(3)
    dma = [f'global_load_lds_dwordx4 v{vL16}, {sr(sKX,2)} {NT}', f'global_load_lds_dwordx4 v{vL16}, {sr(sKX,2)} offset:1024 {NT}']
    for u in range(2, 8):
        if ('mx', u) in lg.q: lg.wait(('mx', u))
        qk(u, 0)
        if u in (3, 5): vm.issue(dma.pop(0), 'kdma')
        qk(u, 1); qk(u, 2)
        if u >= 3:
            qk(u - 1, 3)
            if u + 1 < 8: t3read(u + 1)
    qk(7, 3)
    stamp(5)
    vq = [(u, t) for u in range(8) for t in range(2)]
    def vs(n=1):
        for _ in range(n):
            u, t = vq.pop(0); smf(a, vAccV + 4 * t, vMA + 4 * u, wvB(u, t))
    X = vSm
    vs(3)
    for t in range(3): a.e(f'v_add_f32 v{vQK+4*t}, v{vQK+4*t}, v{vQK+4*t+1}')
    a.e(f'v_cvt_pk_bf16_f32 v{X}, v{vQK}, v{vQK+4}')
    a.e(f'v_add_f32 v{vQK+2}, v{vQK+2}, v{vQK+3}')
    a.e(f'v_add_f32 v{vQK+12}, v{vQK+12}, v{vQK+13}')
    a.e(f'v_add_f32 v{vQK+6}, v{vQK+6}, v{vQK+7}')
    a.e(f'v_cvt_pk_bf16_f32 v{X+1}, v{vQK+8}, v{vQK+12}')
    a.e(f'v_add_f32 v{vQK+10}, v{vQK+10}, v{vQK+11}')
    lg.issue(f'ds_write_b64 v{vXw}, {vr(X,2)}', 'xw')
    a.e(f'v_add_f32 v{vQK+14}, v{vQK+14}, v{vQK+15}')
    a.e(f'v_cvt_pk_bf16_f32 v{X+2}, v{vQK+2}, v{vQK+6}\nv_cvt_pk_bf16_f32 v{X+3}, v{vQK+10}, v{vQK+14}')
    lg.issue(f'ds_write_b64 v{vXw}, {vr(X+2,2)} offset:272', 'xw')
    vs(1)
    a.e(f's_mov_b64 exec, {sr(sKMex,2)}')
    vm.issue(f'global_store_dwordx2 v{vXw}, {vr(X,2)}, {sr(sKM,2)} {pubst}')
    vm.issue(f'global_store_dwordx2 v{vXw}, {vr(X+2,2)}, {sr(sKM,2)} offset:272 {pubst}')
    a.e('s_mov_b64 exec, -1')
    vs(1)
    a.e(f'v_mov_b32 v{vS1}, -1\nv_add_u32 v{vS1+1}, s{sJM}, v{vL16}')
    vs(2)
    a.e(f's_mov_b64 exec, {sr(sMex,2)}'); vm.issue(f'global_store_dword v{vMst}, v{vS1}, {sr(sMra,2)} {st}'); a.e('s_mov_b64 exec, -1')
    vs(1)
    lg.wait_all(); a.e('s_barrier')
    stamp(6)
    for ks in range(4): lg.issue(f'ds_read_b128 {vr(vQK+4*ks,4)}, v{vBq} offset:{64*ks}', ('bq', ks))
    for ks in range(4): lg.issue(f'ds_read_b128 {vr(vMA+4*ks,4)}, v{vAk} offset:{64*ks}', ('ak', ks))
    for i in range(2): lg.issue(f'ds_read_b128 {vr(vVX+4*i,4)}, v{vS1+1} offset:{L_VX-L_MX+1024*i}', 'vx')
    a.e(f's_add_u32 s{sT0}, m0, 8192\ns_mov_b32 m0, s{sT0}')
    vs(o.get('vsr', 2))
    stamp(7)
    for ks in range(4):
        lg.wait(('bq', ks))
        for tl in range(2):
            d = vS0 + 4 * tl
            a.e(f'v_mfma_f32_16x16x32_bf16 {vr(d,4)}, {vr(vKX+16*tl+4*ks,4)}, {vr(vQK+4*ks,4)}, {"0" if ks==0 else vr(d,4)}')
    for ks in range(4):
        lg.wait(('ak', ks))
        a.e(f'v_mfma_f32_16x16x32_bf16 {vr(vSm,4)}, {vr(vMA+4*ks,4)}, {vr(vQK+4*ks,4)}, {"0" if ks==0 else vr(vSm,4)}')
    lg.wait('vx')
    vm.issue(f'global_load_lds_dwordx4 v{vL16}, {sr(sVX,2)} {NT}', 'vdma')
    vs(6 - o.get('vsr', 2))
    stamp(8)
    E = vQK
    order = WO_ORDER
    slots = [vKX, vKX + 8, vKX + 16, vKX + 24, vMA, vMA + 8, vMA + 16, vMA + 24]
    wq = [(i, hf) for i in range(8) for hf in range(2)]
    def wr(n=1):
        for _ in range(n):
            i, hf = wq.pop(0); T, kb = order[i]
            lg.issue(f'ds_read_b128 {vr(slots[i]+4*hf,4)}, v{vWo} offset:{T*16384+kb*2048+hf*1024}', 'wo')
    wr(1)
    for r in range(4): a.e(f'v_cndmask_b32 v{E+r}, v{vS0+r}, v{vS1+r}, {sr(sHalf,2)}')
    a.e(f'v_max3_f32 v{E+5}, v{E}, v{E+1}, v{E+2}')
    a.e(f'v_cndmask_b32 v{E+4}, v{vSm}, v{vSm+1}, {sr(sHalf,2)}')
    a.e(f'v_max3_f32 v{E+5}, v{E+5}, v{E+3}, v{E+4}')
    vs(1); wr(1)
    a.e(f'v_max_f32_dpp v{E+5}, v{E+5}, v{E+5} row_ror:8 row_mask:0xf bank_mask:0xf')
    a.e(f'v_mov_b32 v{E+6}, v{E+5}')
    vs(1); wr(1)
    a.e(f'v_permlane16_swap_b32 v{E+5}, v{E+6}')
    a.e(f'v_max_f32 v{E+5}, v{E+5}, v{E+6}')
    a.e(f'v_mov_b32 v{E+6}, v{E+5}')
    wr(1); vm.issue(f'global_load_lds_dwordx4 v{vL16}, {sr(sVX,2)} offset:1024 {NT}', 'vdma')
    a.e(f'v_permlane32_swap_b32 v{E+5}, v{E+6}')
    a.e(f'v_max_f32 v{E+5}, v{E+5}, v{E+6}')
    a.e(f'v_mul_f32 v{E+5}, s{sC}, v{E+5}')
    for r in range(5): a.e(f'v_fma_f32 v{E+r}, v{E+r}, s{sC}, -v{E+5}')
    for r in range(5): a.e(f'v_exp_f32 v{E+r}, v{E+r}')
    assert not vq
    a.e(f'v_cvt_pk_bf16_f32 v{E+6}, v{E}, v{E+1}\nv_cvt_pk_bf16_f32 v{E+7}, v{E+2}, v{E+3}')
    a.e(f'v_cndmask_b32 v{E+8}, v{E+6}, 0, {sr(sHalf,2)}\nv_cndmask_b32 v{E+9}, v{E+7}, 0, {sr(sHalf,2)}')
    a.e(f'v_cndmask_b32 v{E+10}, 0, v{E+6}, {sr(sHalf,2)}\nv_cndmask_b32 v{E+11}, 0, v{E+7}, {sr(sHalf,2)}')
    a.e(f'v_add_f32 v{vAccV}, v{vAccV}, v{vAccV+1}\nv_add_f32 v{vAccV+2}, v{vAccV+2}, v{vAccV+3}')
    stamp(9)
    T0, T1 = vS0, vS1
    a.e(f'v_mfma_f32_16x16x32_bf16 {vr(T0,4)}, {vr(vVX,4)}, {vr(E+8,4)}, 0')
    a.e(f'v_cndmask_b32 v{E+12}, v{E+4}, 0, {sr(sHalf,2)}\nv_cndmask_b32 v{E+13}, 0, v{E+4}, {sr(sHalf,2)}')
    a.e(f'v_mfma_f32_16x16x32_bf16 {vr(T1,4)}, {vr(vVX+4,4)}, {vr(E+8,4)}, 0')
    a.e(f'v_cvt_pk_bf16_f32 v{vAccV}, v{vAccV}, v{vAccV+2}\nv_cvt_pk_bf16_f32 v{E+12}, v{E+12}, v{E+13}')
    a.e(f'v_add_f32 v{vAccV+4}, v{vAccV+4}, v{vAccV+5}\nv_add_f32 v{vAccV+6}, v{vAccV+6}, v{vAccV+7}')
    a.e(f'v_mov_b32 v{E+13}, 0\nv_mov_b32 v{E+14}, 0')
    a.e(f'v_cvt_pk_bf16_f32 v{vAccV+1}, v{vAccV+4}, v{vAccV+6}\nv_mov_b32 v{E+15}, v{E+12}')
    a.e(f'v_add_f32 v{E+6}, v{E}, v{E+1}\nv_add_f32 v{E+7}, v{E+2}, v{E+3}')
    a.e(f'v_mfma_f32_16x16x16_bf16 {vr(T0,4)}, {vr(vAccV,2)}, {vr(E+12,2)}, {vr(T0,4)}')
    a.e(f'v_add_f32 v{E+6}, v{E+6}, v{E+4}')
    a.e(f'v_mfma_f32_16x16x16_bf16 {vr(T1,4)}, {vr(vAccV,2)}, {vr(E+14,2)}, {vr(T1,4)}')
    a.e(f'v_add_f32 v{E+6}, v{E+6}, v{E+7}')
    wr(2)
    a.e(f'v_add_f32_dpp v{E+6}, v{E+6}, v{E+6} row_ror:8 row_mask:0xf bank_mask:0xf')
    a.e(f'v_mov_b32 v{E+7}, v{E+6}')
    wr(2)
    a.e(f'v_permlane16_swap_b32 v{E+6}, v{E+7}')
    a.e(f'v_add_f32 v{E+6}, v{E+6}, v{E+7}')
    a.e(f'v_mov_b32 v{E+7}, v{E+6}')
    a.e(f'v_add_f32_dpp v{vSm}, v{T0}, v{T0} row_ror:8 row_mask:0xf bank_mask:0x3')
    a.e(f'v_add_f32_dpp v{vSm+1}, v{T0+1}, v{T0+1} row_ror:8 row_mask:0xf bank_mask:0x3')
    a.e(f'v_permlane32_swap_b32 v{E+6}, v{E+7}')
    a.e(f'v_add_f32 v{E+6}, v{E+6}, v{E+7}')
    a.e(f'v_rcp_f32 v{E+6}, v{E+6}')
    for r in range(2, 4):
        a.e(f'v_add_f32_dpp v{vSm+r}, v{T0+r}, v{T0+r} row_ror:8 row_mask:0xf bank_mask:0x3')
    for r in range(4):
        a.e(f'v_add_f32_dpp v{vSm+r}, v{T1+r}, v{T1+r} row_ror:8 row_mask:0xf bank_mask:0xc')
    for r in range(4): a.e(f'v_mul_f32 v{vSm+r}, v{vSm+r}, v{E+6}')
    a.e(f'v_cvt_pk_bf16_f32 v{vSm}, v{vSm}, v{vSm+1}\nv_cvt_pk_bf16_f32 v{vSm+1}, v{vSm+2}, v{vSm+3}')
    lg.issue(f'ds_write_b64 v{vOw}, {vr(vSm,2)}', 'ow')
    G0, G1 = vQK, vAccV
    a.e(f'v_lshrrev_b32 v{vVX}, 1, v{vL16}')
    zero16(G0)
    vm.issue(f'global_store_dwordx2 v{vVX}, {vr(vAccV,2)}, {sr(sVM,2)} {pubst}')
    a.e(f's_cmp_ge_u32 s{sStep}, 63\ns_cbranch_scc1 CH_DONE')
    wr(len(wq))
    zero16(G1)
    vm.wait('kdma')
    lg.wait('ow'); a.e('s_barrier')
    stamp(10)
    lg.issue(f'ds_read_b128 {vr(vVX,4)}, v{vOr}', 'o0'); lg.issue(f'ds_read_b128 {vr(vVX+4,4)}, v{vOr} offset:128', 'o1')
    add64(a, sKM, sKM, imm=32 * 4096); add64(a, sVM, sVM, imm=32 * 2048)
    a.e(f's_add_u32 s{sStep}, s{sStep}, 1')
    step_bases(a)
    lg.wait('o0')
    for i in range(16):
        T, kb = order[i]
        if i == 2: lg.wait('o1')
        G = (G0 if T < 4 else G1) + 4 * (T & 3)
        smf(a, G, vVX + 4 * kb, vr(slots[i], 8) if i < 8 else ar(aWO + (i - 8) * 8, 8))
        if 10 <= i <= 13:
            t = i - 10
            a.e(f'v_add_f32 v{G0+4*t}, v{G0+4*t}, v{G0+4*t+1}\nv_add_f32 v{G0+4*t+2}, v{G0+4*t+2}, v{G0+4*t+3}')
        if i == 14:
            a.e(f'v_cvt_pk_bf16_f32 v{vSm}, v{G0}, v{G0+4}\nv_cvt_pk_bf16_f32 v{vSm+1}, v{G0+8}, v{G0+12}')
        if i == 15:
            a.e(f'v_cvt_pk_bf16_f32 v{vSm+2}, v{G0+2}, v{G0+6}\nv_cvt_pk_bf16_f32 v{vSm+3}, v{G0+10}, v{G0+14}')
    a.e(f'v_and_or_b32 v{vSm}, v{vSm}, -2, s{sSent}')
    a.e(f'global_store_dwordx4 v{vPst}, {vr(vSm,4)}, {sr(sPst0,2)} {st}')
    for t in range(4):
        a.e(f'v_add_f32 v{G1+4*t}, v{G1+4*t}, v{G1+4*t+1}\nv_add_f32 v{G1+4*t+2}, v{G1+4*t+2}, v{G1+4*t+3}')
    a.e(f'v_cvt_pk_bf16_f32 v{G0}, v{G1}, v{G1+4}\nv_cvt_pk_bf16_f32 v{G0+1}, v{G1+8}, v{G1+12}')
    a.e(f'v_cvt_pk_bf16_f32 v{G0+2}, v{G1+2}, v{G1+6}\nv_and_or_b32 v{G0}, v{G0}, -2, s{sSent}\nv_cvt_pk_bf16_f32 v{G0+3}, v{G1+10}, v{G1+14}')
    a.e(f'global_store_dwordx4 v{vPst}, {vr(G0,4)}, {sr(sPst1,2)} {st}')
    stamp(11)
    stamp_collect()
    a.e(f'v_add_u32 v{vMA}, {L_KX}, v{vL16}')
    for i in range(8): a.e(f'ds_read_b128 {vr(vKX+4*i,4)}, v{vMA} offset:{1024*i}')
    a.e(f's_mov_b32 s{sSpin}, 0')
    PL = vMA + 8; RA = vS0
    for i in range(4): a.e(f'v_mov_b32 v{RA+i}, 0')
    if o['ack1']: a.e('s_waitcnt vmcnt(0)')
    stamp(0)
    def p1loads():
        a.e(f'global_load_dwordx4 {vr(PL,4)}, v{vL16}, {sr(sPld,2)} sc1\nglobal_load_dwordx4 {vr(PL+4,4)}, v{vL16}, {sr(sPld,2)} offset:1024 sc1')
    D1 = o.get('d1', 1)
    p1loads()
    a.e('s_waitcnt vmcnt(0)')
    a.label(L('P1W'))
    a.e(f'v_bitop3_b32 v{RA+4}, v{PL}, v{PL+4}, s{sSent} bitop3:0x7e')
    a.e(f'v_smfmac_f32_16x16x64_bf16 {vr(RA,4)}, {vr(vSel,4)}, {vr(PL,8)}, v{vSelI}')
    a.e(f'v_and_b32 v{RA+4}, 1, v{RA+4}\nv_cmp_ne_u32 vcc, 0, v{RA+4}\ns_cbranch_vccnz {L("P1R")}')
    a.e('s_nop 4')
    a.e(f'v_add_f32_dpp v{RA}, v{RA}, v{RA} row_ror:4 row_mask:0xf bank_mask:0xf\nv_add_f32_dpp v{RA+1}, v{RA+1}, v{RA+1} row_ror:4 row_mask:0xf bank_mask:0xf\ns_nop 0')
    a.e(f'v_add_f32_dpp v{RA}, v{RA}, v{RA} row_ror:8 row_mask:0xf bank_mask:0xf\nv_add_f32_dpp v{RA+1}, v{RA+1}, v{RA+1} row_ror:8 row_mask:0xf bank_mask:0xf')
    a.e(f's_mov_b64 exec, {sr(sMex,2)}')
    a.e(f'v_cvt_pk_bf16_f32 v{RA}, v{RA}, v{RA+1}')
    stamp(1)
    a.e(f'v_min_u32 v{RA}, -2, v{RA}')
    a.e(f'global_store_dword v{vMst}, v{RA}, {sr(sMst,2)} {st}\ns_mov_b64 exec, -1')
    if o['ack2']: a.e('s_waitcnt vmcnt(0)')
    stamp(2)
    a.e(f's_branch {L("STEP")}')
    a.label(L('P2R'))
    a.e('s_mov_b64 exec, vcc')
    p2loads()
    a.e('s_mov_b64 exec, -1')
    a.e(f's_add_u32 s{sSpin}, s{sSpin}, 1\ns_add_u32 s100, s100, 1\ns_cmp_gt_u32 s{sSpin}, {SPIN_MAX}\ns_cbranch_scc1 CH_ABORT')
    a.e(f's_waitcnt vmcnt({2*(D2-1)})')
    p2check(L("P2R"))
    a.e(f's_branch {L("P2OK")}')
    a.label(L('P1R'))
    a.e('s_mov_b64 exec, vcc')
    p1loads()
    a.e('s_mov_b64 exec, -1')
    a.e(f's_add_u32 s{sSpin}, s{sSpin}, 1\ns_add_u32 s101, s101, 1\ns_cmp_gt_u32 s{sSpin}, {SPIN_MAX}\ns_cbranch_scc1 CH_ABORT')
    a.e(f's_waitcnt vmcnt({2*(D1-1)})')
    a.e(f'v_bitop3_b32 v{RA+4}, v{PL}, v{PL+4}, s{sSent} bitop3:0x7e')
    a.e(f'v_and_b32 v{RA+4}, 1, v{RA+4}\nv_cmp_ne_u32 vcc, 0, v{RA+4}\ns_cbranch_vccnz {L("P1R")}')
    for i in range(4): a.e(f'v_mov_b32 v{RA+i}, 0')
    a.e(f's_branch {L("P1W")}')


def chain_preload(a):
    a.e('s_getpc_b64 s[18:19]')
    a.label('CH_PC')
    a.e('s_add_u32 s18, s18, CH_TABLE-CH_PC\ns_addc_u32 s19, s19, 0')
    a.e(f'v_mul_u32_u24 v127, {NCH*4}, v0')
    for q in range(5): a.e(f'global_load_dwordx4 {vr(4*q,4)}, v127, s[18:19] offset:{16*q}')

def gen_chain_body(a, pubst='', opts=None):
    o = opts or {}
    a.label('CHAIN')
    a.e(f's_lshl_b32 s{sR}, s{sHead}, 2\ns_add_u32 s{sR}, s{sR}, s{sWave}')
    a.e(f's_mov_b32 s{sMex}, 0x000f000f\ns_mov_b32 s{sMex+1}, 0x000f000f\ns_mov_b32 s{sHalf}, 0xff00ff00\ns_mov_b32 s{sHalf+1}, 0xff00ff00')
    a.e(f's_mov_b32 s{sC}, {f32bits(CSC)}')
    for j in range(4): a.e(f's_xor_b32 s{sJ+j}, s{sWave}, {j}\ns_lshl_b32 s{sJ+j}, s{sJ+j}, 11\ns_add_u32 s{sJM+j}, s{sJ+j}, {L_MX}')
    a.e(f's_cmp_ge_u32 s{sWave}, 2\ns_cselect_b64 {sr(sKMex,2)}, -1, 0')
    for i in range(4): a.e(f'v_mov_b32 v{20+i}, 0')
    a.e('v_mov_b32 v24, -1')
    a.e(f's_lshl_b32 s{sT0}, s{sHead}, 13\ns_add_u32 s{sT0}, s{sT0}, s{sJ}')
    a.e(f's_add_u32 s{sT1}, s{sT0}, {WS_KX}'); add64(a, sKX, sWs, sT1)
    a.e(f's_add_u32 s{sT1}, s{sT0}, {WS_VX}'); add64(a, sVX, sWs, sT1)
    a.e(f's_lshl_b32 s{sT0}, s{sHead}, 12\ns_add_u32 s{sT0}, s{sT0}, {WS_KM - (L_XQ + 8*272)}'); add64(a, sKM, sWs, sT0)
    a.e(f's_lshl_b32 s{sT0}, s{sHead}, 11\ns_lshl_b32 s{sT1}, s{sWave}, 9\ns_add_u32 s{sT0}, s{sT0}, s{sT1}\ns_add_u32 s{sT0}, s{sT0}, {WS_VM}'); add64(a, sVM, sWs, sT0)
    a.e(f's_mul_i32 s{sT0}, s{sR}, {RS}')
    add64(a, sPld, sWs, sT0); add64(a, sPst0, sPld, imm=128 * RS)
    a.e(f's_lshl_b32 s{sT0}, s{sR}, 6\ns_add_u32 s{sT0}, s{sT0}, {WS_M+8192}'); add64(a, sMst, sWs, sT0)
    a.e(f's_and_b32 s{sT0}, s{sR}, 7\ns_lshl_b32 s{sT0}, s{sT0}, 7'); add64(a, sMld, sMem0, sT0)
    a.e('s_waitcnt vmcnt(0)')
    a.e(f'global_load_dwordx2 v[28:29], v18, {sr(sMld,2)}\nglobal_load_dwordx2 v[30:31], v18, {sr(sMld,2)} offset:16')
    for b in (sPld, sPst0):
        a.e(f'global_store_dwordx4 v{vL16}, v[20:23], {sr(b,2)} sc1\nglobal_store_dwordx4 v{vL16}, v[20:23], {sr(b,2)} offset:1024 sc1')
    a.e(f's_mov_b64 exec, {sr(sMex,2)}')
    for k in range(3):
        a.e(f'global_store_dword v{vMst}, v24, {sr(sMst,2)} sc1')
        add64(a, sMst, sMst, imm=8192)
    a.e('s_mov_b64 exec, -1')
    a.e(f's_lshl_b32 s{sT0}, s{sR}, 10\ns_add_u32 s{sT0}, s{sT0}, {WS_M}'); add64(a, sMld, sWs, sT0)
    a.e(f's_cmp_lt_u32 s{sR}, 8\ns_cselect_b64 s[{sMra}:{sMra+1}], -1, 0')
    a.e('s_waitcnt vmcnt(7)')
    for i in range(4): a.e(f'v_min_u32 v{28+i}, -2, v{28+i}')
    a.e(f's_mov_b64 exec, s[{sMra}:{sMra+1}]\nglobal_store_dwordx4 v{vL16}, v[28:31], {sr(sMld,2)} sc1\ns_mov_b64 exec, -1')
    def kv0(a):
        if 'kvwait0' in o: o['kvwait0'](a)
        a.e(f's_add_u32 s{sT0}, s{sJ}, {L_KX}\ns_mov_b32 m0, s{sT0}\ns_nop 0')
        a.e(f'global_load_lds_dwordx4 v{vL16}, {sr(sKX,2)}\nglobal_load_lds_dwordx4 v{vL16}, {sr(sKX,2)} offset:1024')
        a.e(f's_add_u32 s{sT0}, s{sT0}, 8192\ns_mov_b32 m0, s{sT0}\ns_nop 0')
        a.e(f'global_load_lds_dwordx4 v{vL16}, {sr(sVX,2)}\nglobal_load_lds_dwordx4 v{vL16}, {sr(sVX,2)} offset:1024')
        return 4
    def signal(a):
        a.e(f'v_mov_b32 v20, 8\nv_mov_b32 v21, 1\ns_cmp_eq_u32 s{sWave}, 0\ns_cselect_b64 exec, 1, 0')
        a.e(f'global_atomic_add v20, v21, {sr(sDbg,2)}\ns_mov_b64 exec, -1')
        return 1
    def rendezvous(a):
        a.e(f's_mov_b32 s{sSpin}, 0\nv_mov_b32 v20, 0')
        a.label('CH_RV')
        a.e(f'global_load_dwordx4 v[24:27], v20, {sr(sDbg,2)} sc1')
        a.e(f's_add_u32 s{sSpin}, s{sSpin}, 1\ns_cmp_gt_u32 s{sSpin}, {SPIN_MAX}\ns_cbranch_scc1 CH_ABORT')
        a.e('s_waitcnt vmcnt(0)')
        a.e(f'v_readfirstlane_b32 s{sT0}, v26\nv_readfirstlane_b32 s{sMode}, v25\ns_nop 1\ns_cmp_ge_u32 s{sT0}, 32\ns_cbranch_scc0 CH_RV')
        n = kv0(a)
        a.e(f's_add_u32 s{sT0}, s{sJ}, {L_MX}\ns_mov_b32 m0, s{sT0}')
        a.e(f's_and_b32 s{sT0}, s{sR}, 31\ns_lshl_b32 s{sT0}, s{sT0}, 10\ns_add_u32 s{sT0}, s{sT0}, {WS_M}'); add64(a, sMld, sWs, sT0)
        for b in (sPld, sPst0):
            a.e(f'global_load_lds_dwordx4 v{vL16}, {sr(b,2)} sc1\nglobal_load_lds_dwordx4 v{vL16}, {sr(b,2)} offset:1024 sc1')
        a.e(f'global_load_lds_dwordx4 v{vL16}, {sr(sMld,2)} sc1')
        return n + 5
    gen_weight_load(a, {('rb', 0): signal, 13: rendezvous})
    for i in range(4): a.e(f'v_mov_b32 v{vZ+i}, 0')
    a.e(f's_mov_b32 s{sStep}, 0\ns_mov_b32 s100, 0\ns_mov_b32 s101, 0')
    step_bases(a)
    a.e('s_waitcnt vmcnt(0)\ns_barrier')
    a.e(f'v_add_u32 v{vMA}, {L_KX}, v{vL16}')
    for i in range(8): a.e(f'ds_read_b128 {vr(vKX+4*i,4)}, v{vMA} offset:{1024*i}')
    if o.get('stamps') or o.get('time'):
        a.e(f's_memrealtime s[2:3]\ns_memtime s[72:73]\ns_waitcnt lgkmcnt(0)\ns_mov_b32 s96, s72\ns_mov_b32 s97, s72\ns_mov_b32 s74, s72\ns_mov_b32 s76, s72')
        a.e(f'v_mov_b32 v20, {L_MISC}\nv_lshrrev_b32 v21, 2, v{vL16}\nv_add_u32 v20, v20, v21\nv_mov_b32 v21, 0\nds_write_b32 v20, v21 offset:64\ns_waitcnt lgkmcnt(0)\ns_barrier')
    a.e(f's_cmp_lg_u32 s{sMode}, 0\ns_cbranch_scc1 ENTRY_slow')
    gen_loop(a, '', 'fast', pubst, o)
    gen_loop(a, 'sc1', 'slow', pubst, o)

def emit_table(a, name, rows):
    a.e('.p2align 6')
    a.label(name)
    for r in rows:
        a.e('.long ' + ', '.join(hex(x) for x in r))
```

```python
import re

class Asm:
    def __init__(self):
        self.lines = []
        self.uid = 0
    def e(self, s):
        for ln in s.split('\n'):
            ln = ln.strip()
            if ln:
                self.lines.append(ln)
    def label(self, name):
        self.lines.append(name + ':')
    def newlabel(self, p='L'):
        self.uid += 1
        return f'{p}_{self.uid}'
    def text(self):
        out = []
        for ln in self.lines:
            if ln.endswith(':') or ln.startswith('.'):
                out.append(ln)
            else:
                out.append('    ' + ln)
        return '\n'.join(out) + '\n'

def vr(b, n=1):
    return f'v{b}' if n == 1 else f'v[{b}:{b+n-1}]'
def ar(b, n=1):
    return f'a{b}' if n == 1 else f'a[{b}:{b+n-1}]'
def sr(b, n=1):
    return f's{b}' if n == 1 else f's[{b}:{b+n-1}]'

_REG = re.compile(r'^(-|abs\()?([vas])(\d+|\[(\d+):(\d+)\])\)?$')
def regs_of(op):
    op = op.strip()
    if op in ('vcc', 'vcc_lo', 'vcc_hi'): return {('s', 'vcc')}
    if op in ('exec', 'exec_lo', 'exec_hi'): return {('s', 'exec')}
    if op == 'm0': return {('s', 'm0')}
    m = _REG.match(op)
    if not m: return set()
    k = m.group(2)
    if m.group(4) is not None:
        return {(k, i) for i in range(int(m.group(4)), int(m.group(5)) + 1)}
    return {(k, int(m.group(3)))}

TRANS = ('v_exp_f32', 'v_log_f32', 'v_rcp_f32', 'v_rsq_f32', 'v_sqrt_f32', 'v_sin_f32', 'v_cos_f32')

class Ins:
    def __init__(self, text):
        self.text = text
        t = text.split(';')[0].strip()
        parts = t.split(None, 1)
        self.op = parts[0]
        rest = parts[1] if len(parts) > 1 else ''
        ops = [o.strip() for o in rest.split(',')]
        mods = ''
        if ops:
            last = ops[-1].split(None, 1)
            if len(last) > 1:
                ops[-1] = last[0]; mods = last[1]
        self.ops = [o for o in ops if o]
        self.mods = mods
        op = self.op
        self.kind = 'other'
        self.w = set(); self.r = set(); self.rA = set(); self.rC = set(); self.passes = 0
        self.dpp = ('_dpp' in op) or ('row_' in mods) or ('quad_perm' in mods)
        R = [regs_of(o) for o in self.ops]
        if op.startswith('v_mfma') or op.startswith('v_smfmac'):
            self.kind = 'mfma'
            self.passes = 8 if '32x32' in op else (2 if '4x4' in op else 4)
            self.w = R[0]
            if op.startswith('v_smfmac'):
                self.rC = R[0]; self.rA = R[1] | R[2] | R[3]
            else:
                self.rC = R[3]; self.rA = R[1] | R[2]
            self.r = self.rA | self.rC
        elif op.startswith('v_'):
            self.kind = 'valu'
            if op.startswith('v_permlane') and 'swap' in op:
                self.w = R[0] | R[1]; self.r = R[0] | R[1]
            elif op.startswith('v_cmp'):
                self.w = R[0]; self.r = set().union(*R[1:])
            elif op.startswith(('v_add_co', 'v_sub_co', 'v_addc_co', 'v_subb_co', 'v_div_scale')):
                self.w = R[0] | R[1]; self.r = set().union(*R[2:])
            else:
                self.w = R[0]; self.r = set().union(*R[1:]) if len(R) > 1 else set()
                if op.startswith(('v_fmac', 'v_dot2c', 'v_writelane')) or (self.dpp):
                    self.r |= R[0]
                if op.startswith('v_cndmask') and len(R) == 3:
                    self.r |= {('s', 'vcc')}
        elif op.startswith('ds_'):
            self.kind = 'ds'
            if op.startswith(('ds_read', 'ds_bpermute', 'ds_permute', 'ds_swizzle')):
                self.w = R[0]; self.r = set().union(*R[1:])
            else:
                self.r = set().union(*R)
        elif op.startswith(('global_', 'buffer_', 'flat_')):
            self.kind = 'vmem'
            if 'load' in op:
                if 'lds' in mods.split() or '_lds_' in op:
                    self.r = set().union(*R) | {('s', 'm0')}
                else:
                    self.w = R[0]; self.r = set().union(*R[1:])
            elif 'atomic' in op and ('sc0' in mods.split()) and op.startswith('global_'):
                self.w = R[0]; self.r = set().union(*R[1:])
            else:
                self.r = set().union(*R)
            self.wide_store = ('store' in op and ('x3' in op or 'x4' in op))
            if 'store' in op:
                self.sdata = R[1] if op.startswith('global_') else R[0]
        elif op.startswith('s_'):
            self.kind = 'salu'
            if op.startswith(('s_cmp', 's_cbranch', 's_branch', 's_waitcnt', 's_nop', 's_barrier', 's_endpgm', 's_sleep', 's_setprio')):
                self.r = set().union(*R) if R else set()
            else:
                self.w = R[0] if R else set(); self.r = set().union(*R[1:]) if len(R) > 1 else set()
                if 'saveexec' in op: self.w |= {('s', 'exec')}
    def states(self):
        if self.op == 's_nop':
            return int(self.ops[0], 0) + 1
        return 1

def _vec(s): return {x for x in s if x[0] in 'va'}
def _sca(s): return {x for x in s if x[0] == 's'}

def need(p, c):
    n = 0
    if p.kind == 'valu':
        pw = _vec(p.w); ps = _sca(p.w)
        if c.kind == 'mfma' and pw & c.r: n = max(n, 2)
        if c.kind == 'valu':
            if c.dpp and pw & c.r: n = max(n, 2)
            if c.op.startswith('v_permlane') and pw & c.r: n = max(n, 2)
            if c.op.startswith(('v_readlane', 'v_readfirstlane')) and pw & c.r: n = max(n, 1)
            if p.op.startswith(TRANS) and not c.op.startswith(TRANS) and pw & c.r: n = max(n, 1)
            if ps & c.r: n = max(n, 4 if c.op.startswith(('v_readlane', 'v_writelane')) else 2)
        if c.kind == 'vmem' and ps & c.r: n = max(n, 5)
        if c.kind == 'salu' and ps & c.r and not c.op.startswith('s_cbranch'): n = max(n, 1)
    if p.kind == 'mfma':
        base = {2: (2, 4, 5, 1), 4: (0, 6, 8, 3), 8: (0, 10, 12, 7)}[p.passes]
        if c.kind == 'mfma':
            if p.w & c.rC:
                if p.w == c.rC and p.passes == c.passes: n = max(n, base[0])
                else: n = max(n, base[1])
            if p.w & c.rA: n = max(n, base[2])
            if (p.w & c.w) and not (p.w & c.rC): n = max(n, base[1])
        elif c.kind in ('valu', 'ds', 'vmem'):
            if p.w & (c.r | c.w): n = max(n, base[2])
            if c.kind == 'valu' and (p.rC & c.w): n = max(n, base[3])
    if p.kind == 'vmem' and getattr(p, 'wide_store', False):
        if c.kind == 'valu' and p.sdata & c.w: n = max(n, 2)
        elif c.kind in ('ds', 'vmem', 'mfma') and p.sdata & c.w: n = max(n, 1)
    if p.kind == 'salu' and ('s', 'm0') in p.w and c.kind == 'vmem' and ('s', 'm0') in c.r: n = max(n, 1)
    return n

def check(lines, name=''):
    ins = []; labels = {}
    for ln in lines:
        if ln.endswith(':'):
            labels[ln[:-1]] = len(ins); continue
        if ln.startswith('.') or ln.startswith(';'): continue
        ins.append(Ins(ln))
    probs = []
    def scan(seq, start):
        for ci in range(start, len(seq)):
            c = seq[ci]; d = 0
            for pi in range(ci - 1, max(-1, ci - 22), -1):
                p = seq[pi]
                nd = need(p, c)
                if nd > d:
                    probs.append(f'{name}: need {nd} have {d}: [{p.text}] -> [{c.text}]')
                d += p.states()
                if d >= 20: break
                if p.op in ('s_branch', 's_endpgm') and pi != getattr(scan, 'joint', -1): break
    scan.joint = -1
    scan(ins, 0)
    for i, x in enumerate(ins):
        if x.op.startswith(('s_cbranch', 's_branch')):
            t = labels.get(x.ops[0])
            if t is None: continue
            pre = ins[max(0, i - 21): i + 1]
            for k in range(len(pre) - 2, -1, -1):
                if pre[k].op in ('s_branch', 's_endpgm'):
                    pre = pre[k + 1:]; break
            post = []
            for y in ins[t: t + 21]:
                post.append(y)
                if y.op in ('s_branch', 's_endpgm'): break
            seq = pre + post
            scan.joint = len(pre) - 1
            scan(seq, len(pre))
            scan.joint = -1
    seen = []
    for p in probs:
        if p not in seen: seen.append(p)
    return seen
```

```python
from gen_core import *
from gen_chain import *

WS_O   = WS_END1
WS_QB  = WS_O + 64 * 2 * 144 * 1024
WS_G   = WS_QB + 64 * 2 * 48 * 1024
WS_END = WS_G + 8192
assert WS_END <= (256 << 20)

sX, sWqkv, sWob, sGate, sOut = 74, 76, 78, 80, 82
def load_worker_ptrs(a):
    a.e(f's_load_dwordx2 s[{sX}:{sX+1}], s[0:1], {KA["x"]}\ns_load_dwordx4 s[{sWqkv}:{sWqkv+3}], s[0:1], {KA["wqkv"]}\ns_load_dwordx4 s[{sGate}:{sGate+3}], s[0:1], {KA["gate"]}')
def load_chain_ptrs(a):
    a.e(f's_load_dwordx4 s[4:7], s[0:1], {KA["Wq"]}\ns_load_dwordx4 s[8:11], s[0:1], {KA["Wv"]}\ns_load_dwordx2 s[12:13], s[0:1], {KA["mem0"]}\ns_load_dwordx2 s[14:15], s[0:1], {KA["dbg"]}\ns_load_dwordx2 s[16:17], s[0:1], {KA["ws"]}')

def lane_id(a, d):
    a.e(f'v_mbcnt_lo_u32_b32 v{d}, -1, 0\nv_mbcnt_hi_u32_b32 v{d}, -1, v{d}')

def gen_w1(a, st='', publish=None, tag='W1'):
    L = lambda x: f'{tag}_{x}'
    sTask, sCombo, sStr, sMod, sSeg, sOstr, sTT, sI, sBuf = 26, 27, 28, 29, 30, 31, 32, 33, 34
    sOb, sXb, sXb2 = 36, 38, 40
    sNb = 42
    a.e(f's_lshr_b32 s{sCombo}, s{sTask}, 1\ns_and_b32 s{sSeg}, s{sTask}, 1\ns_and_b32 s{sT0}, s{sCombo}, 31\ns_lshr_b32 s{sT1}, s{sCombo}, 5')
    a.e(f's_mov_b32 s{sStr}, 8192\ns_mov_b32 s{sSRD+2}, {4<<20}\ns_mov_b32 s{sSRD+3}, 0x20000\ns_mov_b32 s{sMod}, 0')
    a.e(f's_mov_b32 s{sOstr}, {2*32*8192}\ns_mov_b32 s{sTT}, 4096')
    a.e(f's_lshl_b32 s{sT2}, s{sT0}, 13\ns_lshl_b32 s{sT3}, s{sWave}, 10')
    lk, lv, lq, lb, ld = [L(x) for x in ('k', 'v', 'q', 'b', 'dec')]
    a.e(f's_cmp_eq_u32 s{sT1}, 1\ns_cbranch_scc1 {lv}\ns_cmp_eq_u32 s{sT1}, 2\ns_cbranch_scc1 {lq}\ns_cmp_eq_u32 s{sT1}, 3\ns_cbranch_scc1 {lb}')
    a.e(f's_mov_b32 s{sSRD}, s{sWk}\ns_and_b32 s{sSRD+1}, s{sWk+1}, 0xffff\ns_add_u32 s{sT2}, s{sT2}, {WS_KX}\ns_branch {ld}')
    a.label(lv)
    a.e(f's_mov_b32 s{sSRD}, s{sWv}\ns_and_b32 s{sSRD+1}, s{sWv+1}, 0xffff\ns_add_u32 s{sT2}, s{sT2}, {WS_VX}\ns_mov_b32 s{sMod}, 1\ns_lshl_b32 s{sT3}, s{sT3}, 1\ns_mov_b32 s{sTT}, 1024\ns_branch {ld}')
    a.label(lq)
    a.e(f's_mov_b32 s{sSRD}, s{sWq}\ns_and_b32 s{sSRD+1}, s{sWq+1}, 0xffff\ns_add_u32 s{sT2}, s{sT2}, {WS_QX}\ns_branch {ld}')
    a.label(lb)
    a.e(f's_mov_b32 s{sSRD}, s{sWqkv}\ns_and_b32 s{sSRD+1}, s{sWqkv+1}, 0xffff\ns_mov_b32 s{sSRD+2}, {512*3072}\ns_mov_b32 s{sStr}, 3072')
    a.e(f's_lshl_b32 s{sT2}, s{sT0}, 12\ns_add_u32 s{sT2}, s{sT2}, {WS_QB}\ns_mov_b32 s{sOstr}, {2*2*48*1024}\ns_mov_b32 s{sTT}, {48*1024}')
    a.label(ld)
    a.e(f's_add_u32 s{sT2}, s{sT2}, s{sT3}\ns_lshr_b32 s{sT3}, s{sOstr}, 1\ns_mul_i32 s{sT3}, s{sT3}, s{sSeg}\ns_add_u32 s{sT2}, s{sT2}, s{sT3}')
    add64(a, sOb, sWs, sT2)
    vl, vn, vg, vL = 1, 2, 3, 4
    vGo, vWr, vS0_, vS1_ = 5, 6, 7, 8
    vXo = 10
    vRd = 18
    vO2 = 9
    lane_id(a, vl)
    a.e(f'v_and_b32 v{vn}, 15, v{vl}\nv_lshrrev_b32 v{vg}, 4, v{vl}\nv_lshlrev_b32 v{vL}, 4, v{vl}')
    a.e(f'v_add_u32 v{vO2}, s{sTT}, v{vL}')
    a.e(f'v_lshlrev_b32 v{vGo}, 3, v{vg}\nv_mul_lo_u32 v{vGo}, v{vGo}, s{sStr}\nv_lshlrev_b32 v22, 4, v{vn}\nv_add_u32 v{vGo}, v{vGo}, v22\ns_lshl_b32 s{sT0}, s{sT0}, 8\nv_add_u32 v{vGo}, s{sT0}, v{vGo}')
    a.e(f'v_mov_b32 v{vS0_}, 0x05040100\nv_mov_b32 v{vS1_}, 0x07060302')
    a.e(f's_lshl_b32 s{sT0}, s{sWave}, 7\ns_mul_i32 s{sT0}, s{sT0}, s{sStr}')
    for u in range(4):
        for j in range(8):
            a.e(f'buffer_load_dwordx4 {vr(32+u*32+j*4,4)}, v{vGo}, {sr(sSRD,4)}, s{sT0} offen')
            a.e(f's_add_u32 s{sT0}, s{sT0}, s{sStr}')
        if u < 3: a.e(f's_mul_i32 s{sT1}, s{sStr}, 24\ns_add_u32 s{sT0}, s{sT0}, s{sT1}')
    a.e(f's_lshl_b32 s{sT0}, s{sWave}, 12')
    a.e(f'v_lshrrev_b32 v22, 2, v{vn}\nv_mul_u32_u24 v22, {32768+16}, v22\nv_and_b32 v23, 3, v{vn}\nv_lshlrev_b32 v23, 6, v23\nv_lshlrev_b32 v24, 8, v{vg}\nv_add3_u32 v22, v22, v23, v24')
    a.e(f's_cmp_eq_u32 s{sMod}, 1\ns_cselect_b64 vcc, -1, 0\nv_cndmask_b32 v{vWr}, v22, v{vL}, vcc\nv_add_u32 v{vWr}, s{sT0}, v{vWr}\nv_add_u32 v25, 65536, v{vWr}')
    for i in range(8):
        a.e(f's_and_b32 s{sT1}, s{sWave}, 1\ns_lshl_b32 s{sT1}, s{sT1}, 7\ns_add_u32 s{sT1}, s{sT1}, {i*16}\nv_xor_b32 v{vXo+i}, s{sT1}, v{vL}')
    for k in range(4):
        a.e(f'v_add_u32 v22, {4*k}, v{vg}\nv_xor_b32 v22, v22, v{vn}\nv_lshlrev_b32 v22, 4, v22\nv_lshl_add_u32 v{vRd+k}, v{vn}, 10, v22')
    lN, lJ = L('pN'), L('pJ')
    a.e(f's_cmp_eq_u32 s{sMod}, 1\ns_cbranch_scc1 {lN}')
    for mode in (0, 1):
        if mode == 1: a.label(lN)
        c = 0
        for u in range(4):
            a.e(f's_waitcnt vmcnt({8*(3-u)})')
            for t in range(8):
                tq = 160 + 4 * (c % 4); c += 1
                for D in range(4):
                    a.e(f'v_perm_b32 v{tq+D}, v{32+u*32+(2*D+1)*4+(t>>1)}, v{32+u*32+(2*D)*4+(t>>1)}, v{vS1_ if t&1 else vS0_}')
                if mode == 0: a.e(f'ds_write_b128 v{vWr}, {vr(tq,4)} offset:{(t>>2)*16384+u*1024+(t&3)*16}')
                else: a.e(f'ds_write_b128 v{vWr if t<4 else 25}, {vr(tq,4)} offset:{(t&3)*16384+u*1024}')
        if mode == 0: a.e(f's_branch {lJ}')
    a.label(lJ)
    a.e(f's_mov_b32 s{sT1}, {32768+16}\ns_cmp_eq_u32 s{sMod}, 1\ns_cselect_b32 s{sT1}, 32768, s{sT1}\ns_mul_i32 s{sT1}, s{sT1}, s{sWave}\nv_add_u32 v22, s{sT1}, v{vL}')
    a.e('s_waitcnt lgkmcnt(0)\ns_barrier')
    for ks in range(16):
        for tl in range(2):
            a.e(f'ds_read_b128 {ar((ks*2+tl)*4,4)}, v22 offset:{tl*16384+ks*1024}')
        if ks % 4 == 3: a.e('s_waitcnt lgkmcnt(4)')
    a.e('s_waitcnt lgkmcnt(0)\ns_barrier')
    a.e(f's_lshl_b32 s{sT0}, s{sSeg}, 15\ns_lshl_b32 s{sT1}, s{sWave}, 13\ns_add_u32 s{sT0}, s{sT0}, s{sT1}')
    add64(a, sXb, sX, sT0)
    def dma_setup():
        a.e(f's_lshl_b32 s{sT0}, s{sWave}, 13\ns_add_u32 s{sT0}, s{sT0}, s{sNb}\ns_mov_b32 m0, s{sT0}')
        add64(a, sXb2, sXb, imm=4096)
    def dma_op(i):
        r = []
        if i == 4: r.append(f's_add_u32 s{sT0}, m0, 4096\ns_mov_b32 m0, s{sT0}\ns_nop 0')
        r.append(f'global_load_lds_dwordx4 v{vXo+i}, {sr(sXb if i<4 else sXb2,2)} offset:{(i&3)*1024}')
        return '\n'.join(r)
    def dma_adv():
        a.e(f's_cmp_lt_u32 s{sI}, 29\ns_cselect_b32 s{sT1}, 65536, 0')
        add64(a, sXb, sXb, sT1)
        a.e(f's_add_u32 s{sNb}, s{sNb}, 32768\ns_cmp_eq_u32 s{sNb}, {3*32768}\ns_cselect_b32 s{sNb}, 0, s{sNb}')
    a.e(f's_mov_b32 s{sNb}, 0\ns_mov_b32 s{sI}, 0')
    for k in range(2):
        dma_setup(); a.e('s_nop 0')
        for i in range(8): a.e(dma_op(i))
        add64(a, sXb, sXb, imm=65536)
        a.e(f's_add_u32 s{sNb}, s{sNb}, 32768')
    a.e(f's_mov_b32 s{sBuf}, 0')
    a.e('s_waitcnt vmcnt(8)\ns_barrier')
    RING = 8; FR = 32
    ACC = [64, 80]
    PK = 96
    def rd(f):
        ks, tt = (f % 32) >> 1, f & 1
        return f'ds_read_b128 {vr(FR+4*(f%RING),4)}, v{vRd+(ks&3)} offset:{tt*16384+(ks>>2)*256}'
    PRE = 6
    for f in range(PRE): a.e(rd(f))
    for mode in (0, 1):
        top = L(f'top{mode}')
        if mode == 0: a.e(f's_cmp_eq_u32 s{sMod}, 1\ns_cbranch_scc1 {L("top1")}')
        a.label(top)
        for ph in range(2):
            acc = ACC[ph]; prev = ACC[ph ^ 1]
            side = []
            if mode == 0:
                for tt in range(2):
                    for tl in range(2):
                        b = prev + (tt * 2 + tl) * 4
                        side.append(f'v_cvt_pk_bf16_f32 v{PK+tt*4+tl*2}, v{b}, v{b+1}\nv_cvt_pk_bf16_f32 v{PK+tt*4+tl*2+1}, v{b+2}, v{b+3}')
            else:
                for tl in range(2):
                    for tt in range(2):
                        b = prev + (tt * 2 + tl) * 4
                        side.append(f'v_cvt_pk_bf16_f32 v{PK+tl*4+tt*2}, v{b}, v{b+1}\nv_cvt_pk_bf16_f32 v{PK+tl*4+tt*2+1}, v{b+2}, v{b+3}')
            side.append(f'global_store_dwordx4 v{vL}, {vr(PK,4)}, {sr(sOb,2)} {st}')
            side.append(f'global_store_dwordx4 v{vO2}, {vr(PK+4,4)}, {sr(sOb,2)} {st}\ns_cmp_lg_u32 s{sI}, 0\ns_cselect_b32 s{sT1}, s{sOstr}, 0\ns_add_u32 s{sOb}, s{sOb}, s{sT1}\ns_addc_u32 s{sOb+1}, s{sOb+1}, 0')
            for f in range(32):
                ks, tt = f >> 1, f & 1
                if f == 16:
                    a.e('s_waitcnt vmcnt(2)\ns_barrier')
                    if publish: publish(a, sI)
                    dma_setup()
                if f + PRE == 32:
                    a.e(f's_add_u32 s{sBuf}, s{sBuf}, 32768\ns_cmp_eq_u32 s{sBuf}, {3*32768}\ns_cselect_b32 s{sT1}, -2, 1\ns_cselect_b32 s{sBuf}, 0, s{sBuf}\ns_lshl_b32 s{sT1}, s{sT1}, 15')
                    for k in range(4): a.e(f'v_add_u32 v{vRd+k}, s{sT1}, v{vRd+k}')
                a.e(rd(f + PRE))
                a.e(f's_waitcnt lgkmcnt({PRE})')
                for tl in range(2):
                    d = acc + (tt * 2 + tl) * 4
                    W = ar((ks * 2 + tl) * 4, 4); X = vr(FR + 4 * (f % RING), 4)
                    A, B = (W, X) if mode == 0 else (X, W)
                    a.e(f'v_mfma_f32_16x16x32_bf16 {vr(d,4)}, {A}, {B}, {"0" if ks==0 else vr(d,4)}')
                if 4 <= f < 4 + 2 * len(side) and f % 2 == 0: a.e(side[(f - 4) // 2])
                if 16 <= f < 32 and f % 2 == 0: a.e(dma_op((f - 16) // 2))
            dma_adv()
            a.e(f's_add_u32 s{sI}, s{sI}, 1')
        a.e(f's_cmp_lt_u32 s{sI}, 32\ns_cbranch_scc1 {top}')
        a.e('s_nop 7')
        prev = ACC[1]
        for x in range(2):
            for y in range(2):
                tt, tl = (x, y) if mode == 0 else (y, x)
                b = prev + (tt * 2 + tl) * 4
                a.e(f'v_cvt_pk_bf16_f32 v{PK+x*4+y*2}, v{b}, v{b+1}\nv_cvt_pk_bf16_f32 v{PK+x*4+y*2+1}, v{b+2}, v{b+3}')
        a.e(f'global_store_dwordx4 v{vL}, {vr(PK,4)}, {sr(sOb,2)} {st}\nglobal_store_dwordx4 v{vO2}, {vr(PK+4,4)}, {sr(sOb,2)} {st}')
        if mode == 0: a.e(f's_branch {L("end")}')
    a.label(L('end'))
    a.e('s_waitcnt vmcnt(0) lgkmcnt(0)\ns_barrier')

def gen_gate(a, st=''):
    lane_id(a, 1)
    a.e('v_and_b32 v2, 15, v1\nv_lshrrev_b32 v3, 4, v1\nv_lshlrev_b32 v4, 8, v3\nv_lshl_add_u32 v5, v2, 10, v4')
    a.e(f's_lshl_b32 s{sT0}, s26, 14'); add64(a, 28, sX, sT0)
    for i in range(16):
        a.e(f'global_load_dwordx4 {vr(8+4*i,4)}, v5, s[28:29] offset:{16*i}')
    for i in range(16):
        a.e(f'global_load_dwordx4 {vr(72+4*i,4)}, v4, {sr(sGate,2)} offset:{16*i}')
    a.e('v_mov_b32 v6, 0\nv_mov_b32 v7, 0\ns_waitcnt vmcnt(0)')
    for i in range(64):
        a.e(f'v_dot2c_f32_bf16 v{6+(i&1)}, v{8+i}, v{72+i}')
    a.e('s_nop 2\nv_add_f32 v6, v6, v7\nv_mov_b32 v7, v6\ns_nop 1\nv_permlane16_swap_b32 v6, v7\nv_add_f32 v6, v6, v7\nv_mov_b32 v7, v6\ns_nop 1\nv_permlane32_swap_b32 v6, v7\nv_add_f32 v6, v6, v7')
    a.e(f'v_mul_f32 v6, {hex(f32bits(-math.log2(math.e)))}, v6\nv_exp_f32 v6, v6\ns_nop 0\nv_add_f32 v6, 1.0, v6\nv_rcp_f32 v6, v6')
    a.e(f's_lshl_b32 s{sT0}, s26, 6\ns_add_u32 s{sT0}, s{sT0}, {WS_G}'); add64(a, 28, sWs, sT0)
    a.e(f'v_lshlrev_b32 v2, 2, v2\ns_mov_b64 exec, 0xffff\nglobal_store_dword v2, v6, s[28:29] {st}\ns_mov_b64 exec, -1')

def gen_battn(a, st='', ld=''):
    CB = 0.25 * math.log2(math.e)
    lane_id(a, 1)
    a.e('v_and_b32 v2, 15, v1\nv_lshrrev_b32 v3, 4, v1')
    a.e(f's_lshr_b32 s27, s26, 4\ns_and_b32 s28, s26, 15\ns_lshl_b32 s29, s27, 4\nv_add_u32 v4, s29, v2')
    a.e(f's_lshl_b32 s{sT0}, s28, 10\ns_add_u32 s{sT0}, s{sT0}, {WS_QB}'); add64(a, 30, sWs, sT0)
    add64(a, 32, 30, imm=16 * 1024); add64(a, 34, 30, imm=32 * 1024)
    a.e(f's_mov_b32 s36, {48*1024}\nv_lshlrev_b32 v5, 8, v3')
    for w in range(8):
        a.e(f'v_subrev_u32 v6, {2*w}, v4\nv_max_i32 v6, 0, v6\nv_lshrrev_b32 v7, 4, v6\nv_mul_lo_u32 v7, v7, s36\nv_and_b32 v6, 15, v6\nv_lshl_add_u32 v6, v6, 4, v5\nv_add_u32 v{8+w}, v6, v7')
    a.e(f'global_load_dwordx4 v[16:19], v8, s[30:31] {ld}')
    for w in range(8): a.e(f'global_load_dwordx4 {vr(20+4*w,4)}, v{8+w}, s[32:33] {ld}')
    for w in range(8): a.e(f'global_load_dwordx4 {vr(52+4*w,4)}, v{8+w}, s[34:35] {ld}')
    add64(a, 38, sWs, imm=WS_G)
    a.e(f'v_lshlrev_b32 v6, 2, v4\nglobal_load_dword v84, v6, s[38:39] {ld}')
    for w in range(8): a.e(f'v_mov_b32 v{88+w}, 0')
    a.e('s_waitcnt vmcnt(9)')
    for i in range(4):
        for w in range(8): a.e(f'v_dot2c_f32_bf16 v{88+w}, v{16+i}, v{20+4*w+i}')
    a.e('s_nop 2')
    for w in range(8): a.e(f'v_mov_b32 v{96+w}, v{88+w}')
    a.e('s_nop 1')
    for w in range(8): a.e(f'v_permlane16_swap_b32 v{88+w}, v{96+w}')
    for w in range(8): a.e(f'v_add_f32 v{88+w}, v{88+w}, v{96+w}')
    a.e(f's_mov_b32 s36, {hex(f32bits(CB))}\nv_mov_b32 v104, {hex(f32bits(-1e9*math.log2(math.e)))}')
    for w in range(8): a.e(f'v_mul_f32 v{88+w}, s36, v{88+w}')
    for w in range(1, 8):
        a.e(f'v_cmp_le_u32 vcc, {2*w}, v4\ns_nop 1\nv_cndmask_b32 v{88+w}, v104, v{88+w}, vcc')
    a.e('v_max3_f32 v105, v88, v89, v90\nv_max3_f32 v106, v91, v92, v93\nv_max3_f32 v105, v105, v94, v95\nv_max_f32 v105, v105, v106')
    for w in range(8): a.e(f'v_sub_f32 v{88+w}, v{88+w}, v105')
    for w in range(8): a.e(f'v_exp_f32 v{88+w}, v{88+w}')
    a.e('s_nop 0\nv_add_f32 v105, v88, v89\nv_add_f32 v106, v90, v91\nv_add_f32 v107, v92, v93\nv_add_f32 v108, v94, v95\nv_add_f32 v105, v105, v106\nv_add_f32 v107, v107, v108\nv_add_f32 v105, v105, v107\nv_rcp_f32 v105, v105')
    a.e('s_waitcnt vmcnt(0)\nv_sub_f32 v84, 1.0, v84\nv_mul_f32 v105, v105, v84')
    for w in range(8):
        for i in range(4):
            s_ = 52 + 4 * w + i
            a.e(f'v_lshlrev_b32 v106, 16, v{s_}\nv_and_b32 v107, 0xffff0000, v{s_}')
            if w == 0: a.e(f'v_mul_f32 v{112+2*i}, v88, v106\nv_mul_f32 v{113+2*i}, v88, v107')
            else: a.e(f'v_fmac_f32 v{112+2*i}, v{88+w}, v106\nv_fmac_f32 v{113+2*i}, v{88+w}, v107')
    for i in range(8): a.e(f'v_mul_f32 v{112+i}, v{112+i}, v105')
    for i in range(4): a.e(f'v_cvt_pk_bf16_f32 v{120+i}, v{112+2*i}, v{113+2*i}')
    a.e(f's_mul_i32 s{sT0}, s27, {144*1024}\ns_add_u32 s28, s28, 128\ns_lshl_b32 s28, s28, 10\ns_add_u32 s{sT0}, s{sT0}, s28\ns_add_u32 s{sT0}, s{sT0}, {WS_O}'); add64(a, 30, sWs, sT0)
    a.e(f'v_lshlrev_b32 v6, 4, v1\nglobal_store_dwordx4 v6, v[120:123], s[30:31] {st}')

def w3_consts(a, B0):
    lane_id(a, B0 + 4)
    a.e(f'v_lshlrev_b32 v{B0}, 4, v{B0+4}\nv_lshlrev_b32 v{B0+2}, 3, v{B0+4}\nv_and_b32 v{B0+5}, 15, v{B0+4}\nv_lshrrev_b32 v{B0+6}, 4, v{B0+4}')
    a.e(f'v_lshlrev_b32 v{B0+3}, 2, v{B0+5}')
    a.e(f'v_lshrrev_b32 v{B0+7}, 2, v{B0+5}\nv_lshlrev_b32 v{B0+7}, 1, v{B0+7}\nv_and_b32 v{B0+8}, 1, v{B0+5}\nv_add_u32 v{B0+7}, v{B0+7}, v{B0+8}\nv_mul_u32_u24 v{B0+7}, 272, v{B0+7}\nv_lshl_add_u32 v{B0+1}, v{B0+6}, 4, v{B0+7}')
    for r in range(4):
        a.e(f'v_lshl_add_u32 v{B0+7}, v{B0+6}, 2, {r}\nv_cmp_le_u32 s[{84+2*r}:{85+2*r}], v{B0+7}, v{B0+5}')

def gen_w3(a, B0, st='', ld=''):
    L16, KMO, L8, N4 = B0, B0 + 1, B0 + 2, B0 + 3
    Q = B0 + 4; K = Q + 32; KM = K + 32; V = KM + 16; VM = V + 32; G = VM + 10
    S = G + 2
    T = S + 20
    P = T + 8
    O = Q
    end = P + 12
    a.e(f's_lshl_b32 s{sT0}, s27, 5\ns_add_u32 s{sT0}, s{sT0}, s28')
    a.e(f's_lshl_b32 s{sT1}, s{sT0}, 13\ns_add_u32 s{sT1}, s{sT1}, {WS_QX+4096}'); add64(a, 30, sWs, sT1)
    a.e(f's_lshl_b32 s{sT1}, s{sT0}, 13\ns_add_u32 s{sT1}, s{sT1}, {WS_KX+4096}'); add64(a, 32, sWs, sT1)
    a.e(f's_lshl_b32 s{sT1}, s{sT0}, 13\ns_add_u32 s{sT1}, s{sT1}, {WS_VX+4096}'); add64(a, 34, sWs, sT1)
    a.e(f's_lshl_b32 s{sT1}, s{sT0}, 12\ns_add_u32 s{sT1}, s{sT1}, {WS_KM}'); add64(a, 36, sWs, sT1)
    a.e(f's_lshl_b32 s{sT1}, s{sT0}, 11\ns_add_u32 s{sT1}, s{sT1}, {WS_VM}'); add64(a, 38, sWs, sT1)
    a.e(f's_lshl_b32 s{sT1}, s27, 7\ns_add_u32 s{sT1}, s{sT1}, {WS_G}'); add64(a, 40, sWs, sT1)
    for i in range(8): a.e(f'global_load_dwordx4 {vr(Q+4*i,4)}, v{L16}, s[30:31] offset:{1024*i-4096} {ld}')
    for i in range(8): a.e(f'global_load_dwordx4 {vr(K+4*i,4)}, v{L16}, s[32:33] offset:{1024*i-4096} {ld}')
    for i in range(4): a.e(f'global_load_dwordx4 {vr(KM+4*i,4)}, v{KMO}, s[36:37] offset:{64*i} {ld}')
    for i in range(8): a.e(f'global_load_dwordx4 {vr(V+4*i,4)}, v{L16}, s[34:35] offset:{1024*i-4096} {ld}')
    for i in range(4): a.e(f'global_load_dwordx2 {vr(VM+2*i,2)}, v{L8}, s[38:39] offset:{512*i} {ld}')
    for qt in range(2): a.e(f'global_load_dword v{G+qt}, v{N4}, s[40:41] offset:{64*qt} {ld}')
    a.e(f's_mul_i32 s{sT0}, s27, {2*144*1024}\ns_lshl_b32 s{sT1}, s28, 12\ns_add_u32 s{sT0}, s{sT0}, s{sT1}\ns_add_u32 s{sT0}, s{sT0}, {WS_O}'); add64(a, 30, sWs, sT0)
    add64(a, 32, 30, imm=144 * 1024)
    a.e(f's_mov_b32 s42, {hex(f32bits(CSC))}\nv_mov_b32 v{VM+8}, 0\nv_mov_b32 v{T+7}, 0xff800000')
    a.e('s_waitcnt vmcnt(18)')
    Sm = [S, S + 8]; Sx = {(0, 0): S + 4, (1, 0): S + 12, (1, 1): S + 16}
    for ks in range(4):
        for (qt, kt), d in Sx.items():
            a.e(f'v_mfma_f32_16x16x32_bf16 {vr(d,4)}, {vr(K+16*kt+4*ks,4)}, {vr(Q+16*qt+4*ks,4)}, {"0" if ks==0 else vr(d,4)}')
    a.e('s_waitcnt vmcnt(14)')
    for ks in range(4):
        for qt in range(2):
            a.e(f'v_mfma_f32_16x16x32_bf16 {vr(Sm[qt],4)}, {vr(KM+4*ks,4)}, {vr(Q+16*qt+4*ks,4)}, {"0" if ks==0 else vr(Sm[qt],4)}')
    for qt in range(2):
        d = Sx[(qt, qt)]
        for r in range(4): a.e(f'v_cndmask_b32 v{d+r}, v{T+7}, v{d+r}, s[{84+2*r}:{85+2*r}]')
    vals = {0: [Sm[0], Sm[0] + 1] + [Sx[(0, 0)] + r for r in range(4)],
            1: [Sm[1], Sm[1] + 1] + [Sx[(1, 0)] + r for r in range(4)] + [Sx[(1, 1)] + r for r in range(4)]}
    def allred(op, x, y):
        for sw in ('v_permlane16_swap_b32', 'v_permlane32_swap_b32'):
            a.e(f'v_mov_b32 v{T+2}, v{x}\nv_mov_b32 v{T+3}, v{y}\ns_nop 0\n{sw} v{x}, v{T+2}\n{sw} v{y}, v{T+3}\n{op} v{x}, v{x}, v{T+2}\n{op} v{y}, v{y}, v{T+3}')
    for qt in range(2):
        v = vals[qt]; m = T + qt
        a.e(f'v_max3_f32 v{m}, v{v[2]}, v{v[3]}, v{v[4]}')
        rest = v[5:] + v[:2]
        while len(rest) >= 2:
            a.e(f'v_max3_f32 v{m}, v{m}, v{rest[0]}, v{rest[1]}'); rest = rest[2:]
        if rest: a.e(f'v_max_f32 v{m}, v{m}, v{rest[0]}')
    allred('v_max_f32', T, T + 1)
    for qt in range(2):
        a.e(f'v_mul_f32 v{T+qt}, s42, v{T+qt}')
        for x in vals[qt]: a.e(f'v_fma_f32 v{x}, v{x}, s42, -v{T+qt}')
        for x in vals[qt]: a.e(f'v_exp_f32 v{x}, v{x}')
    for qt in range(2):
        v = vals[qt]; b = P + 6 * qt
        a.e(f'v_cvt_pk_bf16_f32 v{b}, v{v[2]}, v{v[3]}\nv_cvt_pk_bf16_f32 v{b+1}, v{v[4]}, v{v[5]}')
        if qt == 0: a.e(f'v_mov_b32 v{b+2}, 0\nv_mov_b32 v{b+3}, 0')
        else: a.e(f'v_cvt_pk_bf16_f32 v{b+2}, v{v[6]}, v{v[7]}\nv_cvt_pk_bf16_f32 v{b+3}, v{v[8]}, v{v[9]}')
        a.e(f'v_cvt_pk_bf16_f32 v{b+4}, v{v[0]}, v{v[1]}\nv_mov_b32 v{b+5}, 0')
    a.e(f'v_mov_b32 v{T+4}, 0\nv_mov_b32 v{T+5}, v{P+4}\nv_mov_b32 v{T+6}, 0\nv_mov_b32 v{T+7}, v{P+10}')
    for qt in range(2):
        v = vals[qt]; m = T + qt
        a.e(f'v_add_f32 v{m}, v{v[0]}, v{v[1]}')
        for x in v[2:]: a.e(f'v_add_f32 v{m}, v{m}, v{x}')
    a.e('s_waitcnt vmcnt(0)')
    for qt in range(2):
        for t in range(8):
            d = O + (qt * 8 + t) * 4
            a.e(f'v_mfma_f32_16x16x32_bf16 {vr(d,4)}, {vr(V+4*t,4)}, {vr(P+6*qt,4)}, 0')
        if qt == 0: allred('v_add_f32', T, T + 1)
        for t in range(8):
            d = O + (qt * 8 + t) * 4
            Bm = vr(P + 6 * qt + 4, 2) if t % 2 == 0 else vr(T + 4 + 2 * qt, 2)
            a.e(f'v_mfma_f32_16x16x16_bf16 {vr(d,4)}, {vr(VM+(t&~1),2)}, {Bm}, {vr(d,4)}')
        if qt == 0:
            a.e(f'v_rcp_f32 v{T}, v{T}\nv_rcp_f32 v{T+1}, v{T+1}\ns_nop 0\nv_mul_f32 v{T}, v{T}, v{G}\nv_mul_f32 v{T+1}, v{T+1}, v{G+1}')
    for qt in range(2):
        for kp in range(4):
            d = O + (qt * 8 + 2 * kp) * 4
            if qt == 1 and kp == 3: a.e('s_nop 1')
            for i in range(8): a.e(f'v_mul_f32 v{d+i}, v{d+i}, v{T+qt}')
            for i in range(4): a.e(f'v_cvt_pk_bf16_f32 v{d+i}, v{d+2*i}, v{d+2*i+1}')
            a.e(f'global_store_dwordx4 v{L16}, {vr(d,4)}, s[{30+2*qt}:{31+2*qt}] offset:{1024*kp} {st}')
    return end

W4_LRED = 131072
def w4_load_weights(a):
    lane_id(a, 1)
    a.e('v_lshrrev_b32 v2, 4, v1\nv_lshrrev_b32 v3, 2, v1\nv_and_b32 v3, 3, v3\nv_and_b32 v4, 3, v1\nv_lshlrev_b32 v4, 4, v4')
    a.e('v_lshlrev_b32 v5, 15, v2\nv_lshl_add_u32 v5, v3, 13, v5\nv_add_u32 v5, v5, v4')
    a.e('v_lshlrev_b32 v6, 13, v2\nv_lshl_add_u32 v6, v3, 10, v6\nv_add_u32 v6, v6, v4')
    a.e(f's_lshl_b32 s{sT0}, s{sWave}, 15\nv_lshlrev_b32 v7, 8, v2\nv_lshl_add_u32 v7, v3, 6, v7\nv_lshrrev_b32 v8, 1, v4\nv_add3_u32 v7, v7, v8, s{sT0}')
    a.e(f's_lshl_b32 s{sT0}, s26, 6'); add64(a, 28, sWo, sT0); add64(a, 30, sWob, sT0)
    a.e(f's_mul_i32 s32, s{sWave}, 36')
    for c0 in range(0, 36, 12):
        for kl in range(c0, c0 + 12):
            a.e(f's_add_u32 s33, s32, {kl}\ns_lshr_b32 s34, s33, 2\ns_lshl_b32 s34, s34, 17\ns_and_b32 s35, s33, 3\ns_lshl_b32 s35, s35, 11\ns_add_u32 s34, s34, s35')
            a.e(f's_sub_u32 s35, s33, 128\ns_lshl_b32 s35, s35, 15\ns_cmp_lt_u32 s33, 128\ns_cselect_b32 s34, s34, s35\ns_cselect_b32 s36, s28, s30\ns_cselect_b32 s37, s29, s31\ns_cselect_b32 s35, 1, 4\ns_cselect_b64 vcc, -1, 0')
            a.e(f's_lshl_b32 s35, s35, 10\ns_add_u32 s36, s36, s34\ns_addc_u32 s37, s37, 0\ns_add_u32 s38, s36, s35\ns_addc_u32 s39, s37, 0\nv_cndmask_b32 v9, v6, v5, vcc')
            a.e(f's_lshl_b32 s34, s{sWave}, 15\ns_add_u32 s34, s34, {(kl-c0)*2048}\ns_mov_b32 m0, s34\ns_add_u32 s34, s34, 1024')
            a.e('global_load_lds_dwordx4 v9, s[36:37]\ns_mov_b32 m0, s34\ns_nop 0\nglobal_load_lds_dwordx4 v9, s[38:39]')
        a.e('s_waitcnt vmcnt(0)')
        for kl in range(c0, c0 + 12):
            for tl in range(2):
                for hf in range(2):
                    i = (kl * 2 + tl) * 4 + hf * 2
                    dst = ar(i, 2) if i < 256 else vr(224 + i - 256, 2)
                    a.e(f'ds_read_b64_tr_b16 {dst}, v7 offset:{(kl-c0)*2048+hf*1024+tl*32}')
            if kl % 3 == 2: a.e('s_waitcnt lgkmcnt(4)')
        a.e('s_waitcnt lgkmcnt(0)')

def w4_consts(a):
    lane_id(a, 4)
    a.e(f'v_lshlrev_b32 v0, 4, v4\ns_lshl_b32 s{sT0}, s{sWave}, 12\ns_add_u32 s{sT0}, s{sT0}, {W4_LRED}\nv_add_u32 v1, s{sT0}, v0')
    a.e(f's_lshl_b32 s{sT0}, s{sWave}, 10\ns_add_u32 s{sT0}, s{sT0}, {W4_LRED}\nv_add_u32 v2, s{sT0}, v0')
    a.e(f'v_and_b32 v5, 15, v4\nv_lshrrev_b32 v6, 4, v4\nv_lshlrev_b32 v5, 10, v5\nv_lshl_add_u32 v3, v6, 3, v5')
    a.e(f's_lshr_b32 s{sT0}, s{sWave}, 1\ns_lshl_b32 s{sT0}, s{sT0}, 14\ns_and_b32 s{sT1}, s{sWave}, 1\ns_lshl_b32 s{sT1}, s{sT1}, 5\ns_add_u32 s{sT0}, s{sT0}, s{sT1}\ns_lshl_b32 s{sT1}, s26, 6\ns_add_u32 s{sT0}, s{sT0}, s{sT1}\nv_add_u32 v3, s{sT0}, v3')

def gen_w4_seg(a, ld=''):
    ACC = 8; FR = 32; NR = 40
    a.e(f's_mul_i32 s{sT0}, s27, {2*144*1024}\ns_mul_i32 s{sT1}, s{sWave}, {36*1024}\ns_add_u32 s{sT0}, s{sT0}, s{sT1}\ns_add_u32 s{sT0}, s{sT0}, {WS_O+4096}')
    add64(a, 28, sWs, sT0); add64(a, 30, 28, imm=144 * 1024)
    def ldf(f):
        kl, tt = f >> 1, f & 1
        t = ''
        if kl % 8 == 0 and kl > 0: t += f's_add_u32 s{28+2*tt}, s{28+2*tt}, 8192\ns_addc_u32 s{29+2*tt}, s{29+2*tt}, 0\n'
        return t + f'global_load_dwordx4 {vr(FR+4*(f%NR),4)}, v0, s[{28+2*tt}:{29+2*tt}] offset:{(kl%8)*1024-4096} {ld}'
    PRE = NR - 2
    for f in range(PRE): a.e(ldf(f))
    for f in range(72):
        kl, tt = f >> 1, f & 1
        if f + PRE < 72: a.e(ldf(f + PRE))
        a.e(f's_waitcnt vmcnt({min(PRE, 71-f)})')
        for tl in range(2):
            i = (kl * 2 + tl) * 4
            W = ar(i, 4) if i < 256 else vr(224 + i - 256, 4)
            d = ACC + (tt * 2 + tl) * 4
            a.e(f'v_mfma_f32_16x16x32_bf16 {vr(d,4)}, {W}, {vr(FR+4*(f%NR),4)}, {"0" if kl==0 else vr(d,4)}')
    a.e(f's_lshl_b32 s{sT0}, s27, 15'); add64(a, 28, sOut, sT0)
    a.e('s_nop 3\ns_barrier')
    for q in range(4): a.e(f'ds_write_b128 v1, {vr(ACC+4*q,4)} offset:{1024*q}')
    a.e('s_waitcnt lgkmcnt(0)\ns_barrier')
    for q in range(4): a.e(f'ds_read_b128 {vr(ACC+4*q,4)}, v2 offset:{4096*q}')
    a.e('s_waitcnt lgkmcnt(0)')
    for i in range(4):
        a.e(f'v_add_f32 v{ACC+i}, v{ACC+i}, v{ACC+4+i}\nv_add_f32 v{ACC+8+i}, v{ACC+8+i}, v{ACC+12+i}')
    for i in range(4): a.e(f'v_add_f32 v{ACC+i}, v{ACC+i}, v{ACC+8+i}')
    a.e(f'v_cvt_pk_bf16_f32 v{ACC}, v{ACC}, v{ACC+1}\nv_cvt_pk_bf16_f32 v{ACC+1}, v{ACC+2}, v{ACC+3}')
    a.e(f'global_store_dwordx2 v3, {vr(ACC,2)}, s[28:29]')
```

```python
import sys
from gen_work import *
NAME='gated_mix__memory_aug_recurrent_mem_tr__sliding_local_dilated__prompt'
HDR=open('cdna_kernels/'+NAME+'.s.ref').read().split('; Override launch')[0]

def kstart(a, name):
    a.e('.p2align 8'); a.e(f'.globl {name}'); a.e(f'.type {name},@function'); a.label(name)
def kdesc(name, vgpr, accum):
    return f'''.p2align 6
.amdhsa_kernel {name}
  .amdhsa_next_free_vgpr {vgpr}
  .amdhsa_next_free_sgpr 102
  .amdhsa_accum_offset {accum}
  .amdhsa_group_segment_fixed_size 0
  .amdhsa_kernarg_size 112
  .amdhsa_user_sgpr_count 2
  .amdhsa_user_sgpr_kernarg_segment_ptr 1
  .amdhsa_system_sgpr_workgroup_id_x 1
.end_amdhsa_kernel
'''
def wave_id(a):
    a.e(f'v_lshrrev_b32 v1, 6, v0\ns_nop 0\nv_readfirstlane_b32 s{sWave}, v1')

def build(opts=None):
    o = opts or {}
    probs = []
    k1 = Asm(); kstart(k1, 'pre_kernel')
    k1.e('s_cmp_ge_u32 s2, 248\ns_cbranch_scc1 K1_EXIT')
    load_chain_ptrs(k1); load_worker_ptrs(k1); wave_id(k1)
    k1.e('s_waitcnt lgkmcnt(0)\ns_cmp_ge_u32 s2, 216\ns_cbranch_scc1 K1_GATE\ns_mov_b32 s26, s2')
    gen_w1(k1)
    k1.e('s_branch K1_EXIT')
    k1.label('K1_GATE')
    k1.e(f's_sub_u32 s26, s2, 216\ns_lshl_b32 s26, s26, 2\ns_add_u32 s26, s26, s{sWave}')
    gen_gate(k1)
    k1.label('K1_EXIT'); k1.e('s_endpgm')
    probs += check(k1.lines, 'k1')
    a = Asm(); a.uid = 1000; kstart(a, 'chain_kernel')
    a.e('s_cmp_ge_u32 s2, 256\ns_cbranch_scc1 CH_EXIT')
    load_chain_ptrs(a)
    a.e(f's_getreg_b32 s{sXcc}, hwreg(HW_REG_XCC_ID)\ns_and_b32 s{sXcc}, s{sXcc}, 15')
    a.e(f'v_lshrrev_b32 v1, 6, v0\nv_lshlrev_b32 v121, 6, v0\nv_readfirstlane_b32 s{sWave}, v1\nv_mov_b32 v126, v0')
    a.e(f's_mov_b32 s{sMode}, 0\ns_cmp_eq_u32 s{sXcc}, {o.get("pref",0)}\ns_cbranch_scc0 K2_WORK')
    a.label('TAKE')
    a.e('v_mov_b32 v0, v126')
    chain_preload(a)
    a.e('s_getpc_b64 s[52:53]\nglobal_load_dword v120, v121, s[52:53]')
    a.e('s_waitcnt lgkmcnt(0)')
    a.e(f'v_mov_b32 v122, 0\nv_mov_b32 v123, 1\nv_mov_b32 v125, {L_MISC}')
    a.e(f's_cmp_lg_u32 s{sWave}, 0\ns_cbranch_scc1 TK3')
    a.e(f's_mov_b64 exec, 1\nglobal_atomic_add v124, v122, v123, {sr(sDbg,2)} sc0\ns_waitcnt vmcnt(0)\nds_write_b32 v125, v124')
    a.e(f's_cmp_eq_u32 s{sMode}, 0\ns_cbranch_scc1 TK4\nv_mov_b32 v122, 4\nglobal_atomic_or v122, v123, {sr(sDbg,2)}\ns_waitcnt vmcnt(0)')
    a.label('TK4')
    a.e('s_mov_b64 exec, -1\ns_waitcnt lgkmcnt(0)')
    a.label('TK3')
    a.e(f's_barrier\nds_read_b32 v124, v125\ns_waitcnt lgkmcnt(0)\nv_readfirstlane_b32 s{sHead}, v124\ns_nop 1\ns_cmp_ge_u32 s{sHead}, 32\ns_cbranch_scc0 CHAIN')
    a.e(f's_waitcnt vmcnt(0)\ns_cmp_eq_u32 s{sMode}, 0\ns_cbranch_scc0 CH_EXIT')
    a.label('K2_WORK')
    a.e('s_waitcnt lgkmcnt(0)')
    a.label('K2_LOOP')
    a.e(f'v_mov_b32 v1, 16\nv_mov_b32 v2, 1\ns_mov_b64 exec, 1\nglobal_atomic_add v3, v1, v2, {sr(sDbg,2)} sc0\ns_mov_b64 exec, -1\ns_waitcnt vmcnt(0)\nv_readfirstlane_b32 s43, v3\ns_nop 1')
    a.e('s_cmp_ge_u32 s43, 1024\ns_cbranch_scc1 K2_FIN')
    a.e('s_lshl_b32 s26, s43, 1')
    gen_battn(a)
    a.e('s_lshl_b32 s26, s43, 1\ns_add_u32 s26, s26, 1')
    gen_battn(a)
    a.e('s_branch K2_LOOP')
    a.label('K2_FIN')
    a.e(f'v_mov_b32 v125, {L_MISC}\nv_mov_b32 v2, 0\ns_mov_b32 s{sSpin}, 0\ns_mov_b32 s44, 0')
    a.e(f's_cmp_lg_u32 s{sWave}, 0\ns_cbranch_scc1 K2_DEC')
    a.label('K2_POLL')
    a.e(f'global_load_dword v3, v2, {sr(sDbg,2)} sc1\ns_waitcnt vmcnt(0)\nv_readfirstlane_b32 s{sT0}, v3\ns_nop 1\ns_cmp_ge_u32 s{sT0}, 32\ns_cbranch_scc1 K2_WR')
    a.e(f's_sleep 8\ns_add_u32 s{sSpin}, s{sSpin}, 1\ns_cmp_lt_u32 s{sSpin}, 200\ns_cbranch_scc1 K2_POLL\ns_mov_b32 s44, 1')
    a.label('K2_WR')
    a.e('v_mov_b32 v3, s44\nds_write_b32 v125, v3 offset:4\ns_waitcnt lgkmcnt(0)')
    a.label('K2_DEC')
    a.e(f's_barrier\nds_read_b32 v3, v125 offset:4\ns_waitcnt lgkmcnt(0)\nv_readfirstlane_b32 s44, v3\ns_nop 1\ns_cmp_eq_u32 s44, 0\ns_cbranch_scc1 CH_EXIT')
    a.e(f's_mov_b32 s{sMode}, 1\nv_lshlrev_b32 v121, 6, v126\ns_branch TAKE')
    gen_chain_body(a, '', o)
    a.label('CH_DONE'); a.label('CH_ABORT'); a.label('CH_EXIT')
    a.e('s_endpgm')
    probs += check(a.lines, 'k2')
    k3 = Asm(); k3.uid = 2000; kstart(k3, 'attn_kernel')
    k3.e('s_cmp_ge_u32 s2, 512\ns_cbranch_scc1 K3_EXIT')
    load_chain_ptrs(k3); wave_id(k3)
    w3_consts(k3, 0)
    k3.e(f's_lshl_b32 s28, s2, 2\ns_add_u32 s28, s28, s{sWave}\ns_lshr_b32 s27, s28, 5\ns_and_b32 s28, s28, 31\ns_waitcnt lgkmcnt(0)')
    end3 = gen_w3(k3, 0)
    k3.label('K3_EXIT'); k3.e('s_endpgm')
    probs += check(k3.lines, 'k3')
    k4 = Asm(); k4.uid = 3000; kstart(k4, 'out_kernel')
    k4.e('s_cmp_ge_u32 s2, 256\ns_cbranch_scc1 K4_EXIT')
    load_chain_ptrs(k4); load_worker_ptrs(k4); wave_id(k4)
    k4.e('s_lshr_b32 s26, s2, 4\ns_and_b32 s27, s2, 15\ns_waitcnt lgkmcnt(0)')
    w4_load_weights(k4); w4_consts(k4)
    k4.label('K4_LOOP')
    gen_w4_seg(k4)
    k4.e('s_add_u32 s27, s27, 16\ns_cmp_lt_u32 s27, 64\ns_cbranch_scc1 K4_LOOP')
    k4.label('K4_EXIT'); k4.e('s_endpgm')
    probs += check(k4.lines, 'k4')
    t = Asm(); emit_table(t, 'CH_TABLE', chain_table())
    v3 = (end3 + 7) // 8 * 8
    txt = HDR
    txt += f'; @launch kernel=pre_kernel grid=(248,1,1) block=(256,1,1) lds={LDS_TOTAL}\n'
    txt += f'; @launch kernel=chain_kernel grid=(256,1,1) block=(256,1,1) lds={LDS_TOTAL}\n'
    txt += f'; @launch kernel=attn_kernel grid=(512,1,1) block=(256,1,1) lds=0\n'
    txt += f'; @launch kernel=out_kernel grid=(256,1,1) block=(256,1,1) lds={LDS_TOTAL}\n'
    txt += '.amdgcn_target "amdgcn-amd-amdhsa--gfx950"\n.text\n'
    txt += k1.text() + a.text() + k3.text() + k4.text() + t.text()
    txt += '.section .rodata,"a"\n' + kdesc('pre_kernel', 384, 256) + kdesc('chain_kernel', 512, 256) + kdesc('attn_kernel', v3, v3) + kdesc('out_kernel', 512, 256)
    return txt, probs
if __name__ == '__main__':
    txt, probs = build()
    for p in probs: print(p)
    out = sys.argv[1] if len(sys.argv) > 1 else 'cdna_kernels/'+NAME+'.s'
    open(out, 'w').write(txt)
    print('written', out, len(txt))
```

```python
from gen_core import *
import struct, math

RS = 2176
WS_P   = 0
WS_M   = 0x100000
WS_KX  = 0x200000
WS_VX  = WS_KX + (16 << 20)
WS_QX  = WS_VX + (16 << 20)
WS_KM  = WS_QX + (16 << 20)
WS_VM  = WS_KM + (8 << 20)
WS_END1 = WS_VM + (4 << 20)

WS_QS  = 0x180000
WS_FL  = 0x1C0000
FL_KV, FL_PROG, FL_CNT, FL_BYTES = 0, 4096, 8192, 16384
DB_T, DB_NL, DB_R, DB_INIT, DB_Q1, DB_D1, DB_Q2, DB_D2, DB_Q3, DB_Q3T, DB_Q4 = 0, 4, 8, 12, 16, 20, 24, 28, 32, 36, 64
L_WO = 0
L_MX = 131072
L_XQ = L_MX + 8192
L_OX = L_XQ + 16 * 272
L_KX = 146432
L_VX = L_KX + 8192
L_MISC = L_VX + 8192
LDS_TOTAL = 163840
assert L_OX + 8 * 272 <= L_KX and L_MISC + 64 <= LDS_TOTAL

KA = dict(x=0, mem0=8, Wq=16, Wk=24, Wv=32, Wo=40, seg=48, Bx=56, wqkv=64, wo=72, gate=80, out=88, dbg=96, ws=104)

SPIN_MAX = 400000
PSENT = 0x7F817F81
CSC = (128 ** -0.5) * math.log2(math.e)
def f32bits(x): return struct.unpack('<I', struct.pack('<f', x))[0]

NCH = 20
def chain_table():
    rows = []
    for w in range(4):
        for l in range(64):
            n = l & 15; g = l >> 4
            c = [0] * NCH
            c[0] = l * 16
            c[1] = L_WO + w * 4096 + l * 16
            c[2] = L_WO + 65536 + w * 4096 + l * 16
            c[3] = L_XQ + ((0 if w < 2 else 8) + 2 * g) * 272 + (8 * n + 4 * (w & 1)) * 2
            c[4] = L_XQ + (n & 7) * 272 + g * 16
            c[5] = L_XQ + (8 + 2 * (n >> 2) + (n & 1)) * 272 + g * 16
            c[6] = L_OX + (n & 7) * 272 + (w * 32 + (n >> 3) * 16 + 4 * g) * 2
            c[7] = L_OX + (n >> 1) * 272 + (g * 16 + (n & 1) * 8) * 2
            c[8] = (((2 * w + (n >> 3)) * 4 + 2 * ((n >> 2) & 1)) * 4 + g) * RS + (n & 3) * 16
            c[9] = (g >> 1) * 32 + (n & 3) * 8 + (g & 1) * 4
            c[10] = 0xEEEE if (n & 1) else 0x4444
            sel = [0] * 8; idx = 0
            r = n & 3
            for q in range(4):
                i0, i1 = 0, 1
                if r < 2:
                    s = 2 * (n >> 2) + r
                    if q in (s >> 2, 2 + (s >> 2)):
                        if (s & 3) == 3:
                            i0, i1 = 0, 3; sel[2 * q + 1] = 0x3F80
                        else:
                            i0, i1 = (s & 3), 3; sel[2 * q] = 0x3F80
                idx |= (i0 | (i1 << 2)) << (4 * q)
            c[11] = idx
            for q in range(4): c[12 + q] = sel[2 * q] | (sel[2 * q + 1] << 16)
            c[16] = (8 * (g & 1) + 4 * (g >> 1)) * 8192 + n * 16
            c[17] = (32 * (g & 1) + (g >> 1)) * 1024 + w * 256 + n * 16
            c[18] = (n >> 1) * 1024 + (32 * (g >> 1) + 16 * (n & 1) + 4 * (g & 1)) * 2
            rows.append(c)
    return rows

vL16, vWo, vWo2, vXw, vBq, vAk, vOw, vOr, vPst, vMst, vIdx, vSelI = range(12)
vSel = 12; vZ = 16
vAccV = 20; vS0 = 28; vS1 = 32; vSm = 36; vVX = 40; vQK = 48; vMA = 64; vKX = 96; vWV = 128
sWq, sWk, sWv, sWo, sMem0, sDbg, sWs = 4, 6, 8, 10, 12, 14, 16
sXcc, sHead, sWave, sR, sStep, sSpin = 20, 21, 22, 23, 24, 25
sPst0, sPst1, sPld, sMld, sMst, sMra = 26, 28, 30, 32, 34, 36
sKX, sVX, sKM, sVM = 38, 40, 42, 44
sHalf, sMex = 46, 48
sC, sT0, sT1, sT2, sT3 = 50, 51, 52, 53, 54
sJ = 56
sSRD = 60
sPra = 64
sSent = 66
sMode = 67
sTim = 70

WO_ORDER = [(0,0),(1,0),(0,1),(1,1),(2,0),(3,0),(2,1),(3,1),(4,0),(5,0),(4,1),(5,1),(6,0),(7,0),(6,1),(7,1)]
def smf(a, d, A, B, idx=vIdx):
    a.e(f'v_smfmac_f32_16x16x64_bf16 {vr(d,4)}, {vr(A,4)}, {B}, {vr(idx)}')
def wvB(u, t): return vr(vWV + (u * 2 + t) * 8, 8)

def gen_weight_load(a, hooks):
    LO8, LO1 = 16, 17
    SEL0, SEL1 = 18, 19
    TMP = [20, 24, 28]
    LANDOF = [32, 64, 96, 128, 160, 192, 224, 32, 64, 128, 160, 192, 96, 32, 64, 96]
    a.e(f'v_mov_b32 v{SEL0}, 0x05040100\nv_mov_b32 v{SEL1}, 0x07060302')
    units = [(mat, kbl, half) for mat in range(4) for kbl in range(2) for half in range(2)]
    def issue(ui):
        mat, kbl, half = units[ui]
        land = LANDOF[ui]
        if kbl == 0 and half == 0:
            base = [sWq, sWk, sWv, sWo][mat]
            a.e(f's_mov_b32 s{sSRD}, s{base}\ns_and_b32 s{sSRD+1}, s{base+1}, 0xffff\ns_mov_b32 s{sSRD+2}, {4<<20}\ns_mov_b32 s{sSRD+3}, 0x20000')
            if mat < 3: a.e(f's_lshl_b32 s{sT0}, s{sWave}, 20\ns_lshl_b32 s{sT1}, s{sHead}, 8\ns_add_u32 s{sPra}, s{sT0}, s{sT1}')
            else: a.e(f's_lshl_b32 s{sPra}, s{sHead}, 17')
        ub = (kbl * 64 + 32 * half) * 8192 if mat < 3 else (4 * kbl + 2 * half) * 1024
        sp = 16 * 8192 if mat < 3 else 64 * 1024
        for Dl in range(4):
            for jj in range(2):
                off = ub + (Dl & 1) * sp + (2 * ((Dl >> 1) & 1) + jj) * 8192
                a.e(f's_add_u32 s{sT1}, s{sPra}, {off}')
                r = land + (2 * Dl + jj) * 4
                a.e(f'buffer_load_dwordx4 {vr(r,4)}, v{LO8 if mat<3 else LO1}, {sr(sSRD,4)}, s{sT1} offen')
    cnt = [0]
    def process(ui):
        mat, kbl, half = units[ui]
        land = LANDOF[ui]
        for t in range(8):
            tq = TMP[cnt[0] % 3]; cnt[0] += 1
            c, o = t >> 1, t & 1
            for Dl in range(4):
                a.e(f'v_perm_b32 v{tq+Dl}, v{land+(2*Dl+1)*4+c}, v{land+(2*Dl)*4+c}, v{SEL1 if o else SEL0}')
            a.e(f'ds_write_b128 v{vWo if t<4 else vWo2}, {vr(tq,4)} offset:{(t&3)*16384+kbl*2048+half*1024}')
    def readback(mat):
        a.e('s_waitcnt lgkmcnt(0)')
        if mat < 2: a.e(f's_and_b32 s{sT2}, s{sWave}, 1\ns_lshl_b32 s{sT2}, s{sT2}, 16')
        else: a.e(f's_lshl_b32 s{sT2}, s{sWave}, 15')
        for j in range(4):
            a.e(f's_lshl_b32 s{sT1}, s{sJ+j}, 1\ns_add_u32 s{sT1}, s{sT1}, s{sT2}\nv_add_u32 v{20+j}, s{sT1}, v{vL16}')
        a.e('s_barrier')
        if mat < 2:
            lab = a.newlabel('rbskip')
            a.e(f's_lshr_b32 s{sT0}, s{sWave}, 1\ns_cmp_eq_u32 s{sT0}, {mat}\ns_cbranch_scc0 {lab}')
            for u in range(8):
                for t in range(4):
                    for half in range(2):
                        dst = (u*3+t)*8+half*4 if t < 3 else 192+u*8+half*4
                        a.e(f'ds_read_b128 {ar(dst,4)}, v{20+(u>>1)} offset:{t*16384+(u&1)*2048+half*1024}')
                a.e('s_waitcnt lgkmcnt(4)')
            a.label(lab)
        else:
            for u in range(8):
                for t in range(2):
                    for half in range(2):
                        a.e(f'ds_read_b128 {vr(vWV+(u*2+t)*8+half*4,4)}, v{20+(u>>1)} offset:{t*16384+(u&1)*2048+half*1024}')
                a.e('s_waitcnt lgkmcnt(4)')
        a.e('s_waitcnt lgkmcnt(0)\ns_barrier')
    DEPTH = 5
    issued = 0; extra = {}
    order = []
    def can_issue(k, done):
        prev = [j for j in range(k) if LANDOF[j] == LANDOF[k]]
        return (not prev or prev[-1] < done) and k - done < DEPTH + 1
    def note(n): order.extend([None] * n)
    for ui in range(16):
        while issued < 16 and can_issue(issued, ui):
            issue(issued); order.extend([issued] * 8); issued += 1
        last = max(i for i, x in enumerate(order) if x == ui)
        a.e(f's_waitcnt vmcnt({len(order)-1-last})')
        process(ui)
        if ui in hooks: note(hooks[ui](a))
        if ui % 4 == 3 and ui < 12:
            while issued < 16 and can_issue(issued, ui + 1):
                issue(issued); order.extend([issued] * 8); issued += 1
            readback(ui // 4)
            if ('rb', ui // 4) in hooks: note(hooks[('rb', ui // 4)](a))
    a.e('s_waitcnt lgkmcnt(0)')
    for i in range(8):
        T, kb = WO_ORDER[8 + i]
        for hf in range(2):
            a.e(f'ds_read_b128 {vr(32+i*8+hf*4,4)}, v{vWo2} offset:{(T-4)*16384+kb*2048+hf*1024}')
        if i % 4 == 3: a.e('s_waitcnt lgkmcnt(0)')
    for u in range(8):
        for hf in range(2):
            a.e(f'ds_write_b128 v{vWo2}, {ar(192+u*8+hf*4,4)} offset:{(u>>1)*16384+(u&1)*2048+hf*1024}')
        if u % 4 == 3: a.e('s_waitcnt lgkmcnt(0)')
    for i in range(64): a.e(f'v_accvgpr_write_b32 a{192+i}, v{32+i}')

def add64(a, d, s, off_sreg=None, imm=None):
    if off_sreg is not None:
        a.e(f's_add_u32 s{d}, s{s}, s{off_sreg}\ns_addc_u32 s{d+1}, s{s+1}, 0')
    else:
        a.e(f's_add_u32 s{d}, s{s}, {imm}\ns_addc_u32 s{d+1}, s{s+1}, 0')

def step_bases(a):
    a.e(f's_and_b32 s{sT0}, s{sStep}, 3\ns_lshl_b32 s{sT0}, s{sT0}, 13\ns_add_u32 s{sT0}, s{sT0}, s{sJ}\ns_add_u32 s{sT0}, s{sT0}, {WS_M}')
    add64(a, sMld, sWs, sT0)

def step_bases2(a, part):
    if part == 0:
        a.e(f's_lshl_b32 s{sT2}, s{sR}, 6\ns_add_u32 s{sT2}, s{sT2}, {WS_M}')
        a.e(f's_add_u32 s{sT0}, s{sStep}, 1\ns_and_b32 s{sT0}, s{sT0}, 3\ns_lshl_b32 s{sT0}, s{sT0}, 13\ns_add_u32 s{sT0}, s{sT0}, s{sT2}')
        add64(a, sMst, sWs, sT0)
        a.e(f's_add_u32 s{sT0}, s{sStep}, 2\ns_and_b32 s{sT0}, s{sT0}, 3\ns_lshl_b32 s{sT0}, s{sT0}, 13\ns_add_u32 s{sT0}, s{sT0}, s{sT2}')
        add64(a, sMra, sWs, sT0)
        return
    a.e(f's_and_b32 s{sT0}, s{sStep}, 1\ns_mul_i32 s{sT0}, s{sT0}, {128*RS}')
    a.e(f's_lshl_b32 s{sT1}, s{sHead}, 6\ns_add_u32 s{sT1}, s{sT1}, s{sT0}')
    add64(a, sPst0, sWs, sT1)
    add64(a, sPst1, sPst0, imm=4 * RS)
    a.e(f's_mul_i32 s{sT1}, s{sR}, {RS}\ns_add_u32 s{sT2}, s{sT1}, s{sT0}')
    add64(a, sPld, sWs, sT2)
    a.e(f's_lshr_b32 s{sSent}, s{sStep}, 1\ns_and_b32 s{sSent}, s{sSent}, 1\ns_xor_b32 s{sSent}, s{sSent}, 1')

class Cnt:
    def __init__(self, a, name, mx):
        self.a = a; self.name = name; self.mx = mx; self.q = []
    def issue(self, text, tag=None):
        self.a.e(text); self.q.append(tag)
    def wait(self, tag):
        idx = max(i for i, t in enumerate(self.q) if t == tag)
        n = len(self.q) - 1 - idx
        self.a.e(f's_waitcnt {self.name}({min(n, self.mx)})')
        if n <= self.mx: self.q = self.q[idx + 1:]
    def wait_all(self):
        self.a.e(f's_waitcnt {self.name}(0)'); self.q = []

aWO = 192
def qkB(u, t): return ar((u * 3 + t) * 8, 8)
vSA, vSB = 28, 40
sKMex = 98
sKVok, sFlKV, sFlP, sPubEx, sFlEx = 55, 18, 0, 2, 64
vMXa = 92
sJM = 68

def kv_poll(a, lab, need, t=84):
    a.e(f's_mov_b32 s{sSpin}, 0')
    a.label(lab)
    a.e(f'global_load_dwordx4 {vr(t,4)}, v{vZ}, {sr(sFlKV,2)} sc1')
    a.e(f's_add_u32 s{sSpin}, s{sSpin}, 1\ns_cmp_gt_u32 s{sSpin}, {SPIN_MAX}\ns_cbranch_scc1 CH_ABORT')
    a.e(f's_waitcnt vmcnt(0)\nv_min_u32 v{t}, v{t}, v{t+2}\nv_min_u32 v{t+1}, v{t+1}, v{t+3}\nv_lshlrev_b32 v{t}, 1, v{t}\nv_lshl_add_u32 v{t+1}, v{t+1}, 1, 1\nv_min_u32 v{t}, v{t}, v{t+1}\ns_nop 0\nv_readfirstlane_b32 s{sKVok}, v{t}\ns_nop 1')
    a.e(f's_cmp_ge_u32 s{sKVok}, 64\ns_cselect_b32 s{sKVok}, 100, s{sKVok}\ns_cmp_lt_u32 s{sKVok}, s{need}\ns_cbranch_scc1 {lab}')

def gen_loop(a, st, tag, pubst='', opts=None):
    o = dict(ack1=1, ack2=0, stamps=0); o.update(opts or {})
    L = lambda x: f'{x}_{tag}'
    NST = 12
    NT = o.get('nt', 'sc1' if o.get('merged') else 'nt')
    def stamp(k):
        if o['stamps']:
            a.e(f's_memtime s[{72+2*k}:{73+2*k}]')
    def stamp_collect():
        if o['stamps']:
            a.e('s_waitcnt lgkmcnt(0)')
            if o.get('raw'):
                lab = a.newlabel('noraw')
                a.e(f's_cmp_lg_u32 s{sStep}, {o["raw"]}\ns_cbranch_scc1 {lab}')
                a.e(f'v_mov_b32 v{vMA+28}, {L_MISC}\ns_lshl_b32 s{sT0}, s{sWave}, 6\nv_add_u32 v{vMA+28}, s{sT0}, v{vMA+28}\ns_mov_b64 exec, 1')
                for k in range(NST):
                    a.e(f'v_mov_b32 v{vMA+29}, s{72+2*k}\nds_write_b32 v{vMA+28}, v{vMA+29} offset:{64+4*k}')
                a.e('s_mov_b64 exec, -1\ns_waitcnt lgkmcnt(0)')
                a.label(lab)
                return
            for k in range(NST):
                prev = 96 if k == 0 else 72 + 2 * (k - 1)
                a.e(f's_sub_u32 s{73+2*k}, s{72+2*k}, s{prev}')
            a.e(f's_mov_b32 s96, s{72+2*(NST-1)}')
            a.e(f'v_mov_b32 v{vMA+28}, {L_MISC}\ns_lshl_b32 s{sT0}, s{sWave}, 6\nv_add_u32 v{vMA+28}, s{sT0}, v{vMA+28}\ns_mov_b64 exec, 1')
            a.e(f's_cmp_gt_u32 s{sStep}, {o.get("st0",0)}\ns_cselect_b64 exec, 1, 0\ns_cmp_le_u32 s{sStep}, {o.get("st1",99)}\ns_cselect_b64 exec, exec, 0')
            for k in range(NST):
                a.e(f'v_mov_b32 v{vMA+29}, s{73+2*k}\nds_add_u32 v{vMA+28}, v{vMA+29} offset:{64+4*k}')
            a.e('s_mov_b64 exec, -1\ns_waitcnt lgkmcnt(0)')
    zero16 = lambda d: a.e(f'v_mfma_f32_32x32x16_bf16 {vr(d,16)}, {vr(vZ,4)}, {vr(vZ,4)}, 0')
    lg = Cnt(a, 'lgkmcnt', 15); vm = Cnt(a, 'vmcnt', 63)
    def p2loads():
        a.e(f'global_load_dwordx4 {vr(vMA,4)}, v{vL16}, {sr(sMld,2)} sc1\nglobal_load_dwordx4 {vr(vMA+4,4)}, v{vL16}, {sr(sMld,2)} offset:1024 sc1')
    def t3read(u):
        sl = vSA if u % 2 == 0 else vSB
        for hf in range(2):
            lg.issue(f'ds_read_b128 {vr(sl+4*hf,4)}, v{vWo2} offset:{(u>>1)*16384+(u&1)*2048+hf*1024}', ('t3', u))
    a.label(L('ENTRY'))
    a.label(L('STEP'))
    D2 = o.get('d2', 1); pos = o.get('p2pos', [5]); gap = o.get('gap', 0)
    MG = o.get('merged', 0)
    if o.get('jit'):
        lab = a.newlabel('jit')
        a.e(f's_and_b32 s{sT0}, s{sStep}, 31\ns_cmp_lg_u32 s{sT0}, s{sHead}\ns_cbranch_scc1 {lab}\ns_sleep {o["jit"]}')
        a.label(lab)
    if MG:
        a.e(f's_add_u32 s{sT0}, s{sStep}, 2\ns_cmp_lt_u32 s{sKVok}, s{sT0}\ns_cbranch_scc1 {L("KVP")}')
        a.label(L('KVOK'))
        a.e(f's_cmp_gt_u32 s{sStep}, 0\ns_cselect_b64 {sr(sPubEx,2)}, -1, 0\ns_cmp_gt_u32 s{sStep}, 1\ns_cselect_b32 s{sFlEx}, 1, 0\ns_cmp_eq_u32 s{sWave}, 0\ns_cselect_b32 s{sFlEx}, s{sFlEx}, 0')
        a.e(f's_sub_u32 s{sT0}, s{sStep}, 1\nv_mov_b32 v{vSm+1}, s{sT0}\nv_lshrrev_b32 v{vSm}, 1, v{vL16}')
    chunks = []
    chunks.append(lambda: (a.e(f's_mov_b32 s{sSpin}, 0'), t3read(0), t3read(1), zero16(vQK)))
    chunks.append(lambda: [a.e(f'v_mov_b32 v{vAccV+j}, 0') for j in range(8)] + [a.e(f'v_add_u32 v{vMXa+j}, s{sJM+j}, v{vL16}') for j in range(4)])
    chunks.append(lambda: step_bases2(a, 0))
    chunks.append(lambda: step_bases2(a, 1))
    def lastchunk():
        a.e(f's_add_u32 s{sT0}, s{sJ}, {L_KX}\ns_mov_b32 m0, s{sT0}')
        if not o.get('nopf'): add64(a, sKX, sKX, imm=32 * 8192); add64(a, sVX, sVX, imm=32 * 8192)
    chunks.append(lastchunk)
    for g in range(gap): chunks.append(lambda: a.e('s_nop 15'))
    for i, ch in enumerate(chunks + [lambda: None]):
        for p in pos:
            if p == i: p2loads()
        ch()
    assert len(pos) == D2
    a.e(f's_waitcnt vmcnt({2*(D2-1)})')
    t0, t1 = vMA + 16, vMA + 17
    def p2check(lab):
        a.e(f'v_max3_u32 v{t0}, v{vMA}, v{vMA+1}, v{vMA+2}\nv_max3_u32 v{t1}, v{vMA+3}, v{vMA+4}, v{vMA+5}\nv_max3_u32 v{t0}, v{t0}, v{vMA+6}, v{vMA+7}')
        a.e(f'v_max_u32 v{t0}, v{t0}, v{t1}\nv_cmp_eq_u32 vcc, -1, v{t0}\ns_cbranch_vccnz {lab}')
    p2check(L("P2R"))
    a.label(L('P2OK'))
    lg.issue(f'ds_write_b128 v{vMXa}, {vr(vMA,4)}', 'mxw'); lg.issue(f'ds_write_b128 v{vMXa}, {vr(vMA+4,4)} offset:1024', 'mxw')
    stamp(3)
    def qk(u, t):
        if t < 3: smf(a, vQK + 4 * t, vMA + 4 * u, qkB(u, t))
        else:
            lg.wait(('t3', u)) if ('t3', u) in lg.q else None
            smf(a, vQK + 12, vMA + 4 * u, vr(vSA if u % 2 == 0 else vSB, 8))
    for t in range(4):
        qk(0, t)
        if MG and t == 0:
            a.e(f's_mov_b64 exec, {sr(sPubEx,2)}\nglobal_store_dwordx2 v{vSm}, {vr(vSm+2,2)}, {sr(sVM,2)} sc1\ns_mov_b64 exec, -1')
        if MG and t == 1:
            a.e(f's_mov_b64 exec, {sr(sFlEx,2)}\nglobal_store_dword v{vZ}, v{vSm+1}, {sr(sFlP,2)} sc1\ns_mov_b64 exec, -1')
    lg.wait_all(); a.e('s_barrier')
    stamp(4)
    for u in range(2, 8):
        lg.issue(f'ds_read_b128 {vr(vMA+4*u,4)}, v{vMXa+(u>>1)} offset:{(u&1)*1024}', ('mx', u))
    t3read(2)
    for t in range(4): qk(1, t)
    t3read(3)
    dma = [f'global_load_lds_dwordx4 v{vL16}, {sr(sKX,2)} {NT}', f'global_load_lds_dwordx4 v{vL16}, {sr(sKX,2)} offset:1024 {NT}']
    for u in range(2, 8):
        if ('mx', u) in lg.q: lg.wait(('mx', u))
        qk(u, 0)
        if u in (3, 5): vm.issue(dma.pop(0), 'kdma')
        qk(u, 1); qk(u, 2)
        if u >= 3:
            qk(u - 1, 3)
            if u + 1 < 8: t3read(u + 1)
    qk(7, 3)
    stamp(5)
    vq = [(u, t) for u in range(8) for t in range(2)]
    def vs(n=1):
        for _ in range(n):
            u, t = vq.pop(0); smf(a, vAccV + 4 * t, vMA + 4 * u, wvB(u, t))
    X = vSm
    vs(3)
    for t in range(3): a.e(f'v_add_f32 v{vQK+4*t}, v{vQK+4*t}, v{vQK+4*t+1}')
    a.e(f'v_cvt_pk_bf16_f32 v{X}, v{vQK}, v{vQK+4}')
    a.e(f'v_add_f32 v{vQK+2}, v{vQK+2}, v{vQK+3}')
    a.e(f'v_add_f32 v{vQK+12}, v{vQK+12}, v{vQK+13}')
    a.e(f'v_add_f32 v{vQK+6}, v{vQK+6}, v{vQK+7}')
    a.e(f'v_cvt_pk_bf16_f32 v{X+1}, v{vQK+8}, v{vQK+12}')
    a.e(f'v_add_f32 v{vQK+10}, v{vQK+10}, v{vQK+11}')
    lg.issue(f'ds_write_b64 v{vXw}, {vr(X,2)}', 'xw')
    a.e(f'v_add_f32 v{vQK+14}, v{vQK+14}, v{vQK+15}')
    a.e(f'v_cvt_pk_bf16_f32 v{X+2}, v{vQK+2}, v{vQK+6}\nv_cvt_pk_bf16_f32 v{X+3}, v{vQK+10}, v{vQK+14}')
    lg.issue(f'ds_write_b64 v{vXw}, {vr(X+2,2)} offset:272', 'xw')
    vs(1)
    vm.issue(f'global_store_dwordx2 v{vXw}, {vr(X,2)}, {sr(sKM,2)} {pubst}')
    vm.issue(f'global_store_dwordx2 v{vXw}, {vr(X+2,2)}, {sr(sKM,2)} offset:272 {pubst}')
    vs(1)
    a.e(f'v_mov_b32 v{vS1}, -1\nv_add_u32 v{vS1+1}, s{sJM}, v{vL16}')
    vs(2)
    a.e(f's_mov_b64 exec, {sr(sMex,2)}'); vm.issue(f'global_store_dword v{vMst}, v{vS1}, {sr(sMra,2)} {st}'); a.e('s_mov_b64 exec, -1')
    vs(1)
    lg.wait_all(); a.e('s_barrier')
    stamp(6)
    assert D2 == 1
    for ks in range(4): lg.issue(f'ds_read_b128 {vr(vQK+4*ks,4)}, v{vBq} offset:{64*ks}', ('bq', ks))
    for ks in range(4): lg.issue(f'ds_read_b128 {vr(vMA+4*ks,4)}, v{vAk} offset:{64*ks}', ('ak', ks))
    for i in range(2): lg.issue(f'ds_read_b128 {vr(vVX+4*i,4)}, v{vS1+1} offset:{L_VX-L_MX+1024*i}', 'vx')
    a.e(f's_add_u32 s{sT0}, m0, 8192\ns_mov_b32 m0, s{sT0}')
    vs(o.get('vsr', 2))
    stamp(7)
    for ks in range(4):
        lg.wait(('bq', ks))
        for tl in range(2):
            d = vS0 + 4 * tl
            a.e(f'v_mfma_f32_16x16x32_bf16 {vr(d,4)}, {vr(vKX+16*tl+4*ks,4)}, {vr(vQK+4*ks,4)}, {"0" if ks==0 else vr(d,4)}')
    for ks in range(4):
        lg.wait(('ak', ks))
        a.e(f'v_mfma_f32_16x16x32_bf16 {vr(vSm,4)}, {vr(vMA+4*ks,4)}, {vr(vQK+4*ks,4)}, {"0" if ks==0 else vr(vSm,4)}')
    lg.wait('vx')
    vm.issue(f'global_load_lds_dwordx4 v{vL16}, {sr(sVX,2)} {NT}', 'vdma')
    vs(6 - o.get('vsr', 2))
    stamp(8)
    E = vQK
    order = WO_ORDER
    slots = [vKX, vKX + 8, vKX + 16, vKX + 24, vMA, vMA + 8, vMA + 16, vMA + 24]
    wq = [(i, hf) for i in range(8) for hf in range(2)]
    def wr(n=1):
        for _ in range(n):
            i, hf = wq.pop(0); T, kb = order[i]
            lg.issue(f'ds_read_b128 {vr(slots[i]+4*hf,4)}, v{vWo} offset:{T*16384+kb*2048+hf*1024}', 'wo')
    wr(1)
    for r in range(4): a.e(f'v_cndmask_b32 v{E+r}, v{vS0+r}, v{vS1+r}, {sr(sHalf,2)}')
    a.e(f'v_max3_f32 v{E+5}, v{E}, v{E+1}, v{E+2}')
    a.e(f'v_cndmask_b32 v{E+4}, v{vSm}, v{vSm+1}, {sr(sHalf,2)}')
    a.e(f'v_max3_f32 v{E+5}, v{E+5}, v{E+3}, v{E+4}')
    vs(1); wr(1)
    a.e(f'v_max_f32_dpp v{E+5}, v{E+5}, v{E+5} row_ror:8 row_mask:0xf bank_mask:0xf')
    a.e(f'v_mov_b32 v{E+6}, v{E+5}')
    vs(1); wr(1)
    a.e(f'v_permlane16_swap_b32 v{E+5}, v{E+6}')
    a.e(f'v_max_f32 v{E+5}, v{E+5}, v{E+6}')
    a.e(f'v_mov_b32 v{E+6}, v{E+5}')
    wr(1); vm.issue(f'global_load_lds_dwordx4 v{vL16}, {sr(sVX,2)} offset:1024 {NT}', 'vdma')
    a.e(f'v_permlane32_swap_b32 v{E+5}, v{E+6}')
    a.e(f'v_max_f32 v{E+5}, v{E+5}, v{E+6}')
    a.e(f'v_mul_f32 v{E+5}, s{sC}, v{E+5}')
    for r in range(5): a.e(f'v_fma_f32 v{E+r}, v{E+r}, s{sC}, -v{E+5}')
    for r in range(5): a.e(f'v_exp_f32 v{E+r}, v{E+r}')
    assert not vq
    a.e(f'v_cvt_pk_bf16_f32 v{E+6}, v{E}, v{E+1}\nv_cvt_pk_bf16_f32 v{E+7}, v{E+2}, v{E+3}')
    a.e(f'v_cndmask_b32 v{E+8}, v{E+6}, 0, {sr(sHalf,2)}\nv_cndmask_b32 v{E+9}, v{E+7}, 0, {sr(sHalf,2)}')
    a.e(f'v_cndmask_b32 v{E+10}, 0, v{E+6}, {sr(sHalf,2)}\nv_cndmask_b32 v{E+11}, 0, v{E+7}, {sr(sHalf,2)}')
    a.e(f'v_add_f32 v{vAccV}, v{vAccV}, v{vAccV+1}\nv_add_f32 v{vAccV+2}, v{vAccV+2}, v{vAccV+3}')
    stamp(9)
    T0, T1 = vS0, vS1
    a.e(f'v_mfma_f32_16x16x32_bf16 {vr(T0,4)}, {vr(vVX,4)}, {vr(E+8,4)}, 0')
    a.e(f'v_cndmask_b32 v{E+12}, v{E+4}, 0, {sr(sHalf,2)}\nv_cndmask_b32 v{E+13}, 0, v{E+4}, {sr(sHalf,2)}')
    a.e(f'v_mfma_f32_16x16x32_bf16 {vr(T1,4)}, {vr(vVX+4,4)}, {vr(E+8,4)}, 0')
    a.e(f'v_cvt_pk_bf16_f32 v{vAccV}, v{vAccV}, v{vAccV+2}\nv_cvt_pk_bf16_f32 v{E+12}, v{E+12}, v{E+13}')
    a.e(f'v_add_f32 v{vAccV+4}, v{vAccV+4}, v{vAccV+5}\nv_add_f32 v{vAccV+6}, v{vAccV+6}, v{vAccV+7}')
    a.e(f'v_mov_b32 v{E+13}, 0\nv_mov_b32 v{E+14}, 0')
    a.e(f'v_cvt_pk_bf16_f32 v{vAccV+1}, v{vAccV+4}, v{vAccV+6}\nv_mov_b32 v{E+15}, v{E+12}')
    a.e(f'v_add_f32 v{E+6}, v{E}, v{E+1}\nv_add_f32 v{E+7}, v{E+2}, v{E+3}')
    a.e(f'v_mfma_f32_16x16x16_bf16 {vr(T0,4)}, {vr(vAccV,2)}, {vr(E+12,2)}, {vr(T0,4)}')
    a.e(f'v_add_f32 v{E+6}, v{E+6}, v{E+4}')
    a.e(f'v_mfma_f32_16x16x16_bf16 {vr(T1,4)}, {vr(vAccV,2)}, {vr(E+14,2)}, {vr(T1,4)}')
    a.e(f'v_add_f32 v{E+6}, v{E+6}, v{E+7}')
    wr(2)
    a.e(f'v_add_f32_dpp v{E+6}, v{E+6}, v{E+6} row_ror:8 row_mask:0xf bank_mask:0xf')
    a.e(f'v_mov_b32 v{E+7}, v{E+6}')
    wr(2)
    a.e(f'v_permlane16_swap_b32 v{E+6}, v{E+7}')
    a.e(f'v_add_f32 v{E+6}, v{E+6}, v{E+7}')
    a.e(f'v_mov_b32 v{E+7}, v{E+6}')
    a.e(f'v_add_f32_dpp v{vSm}, v{T0}, v{T0} row_ror:8 row_mask:0xf bank_mask:0x3')
    a.e(f'v_add_f32_dpp v{vSm+1}, v{T0+1}, v{T0+1} row_ror:8 row_mask:0xf bank_mask:0x3')
    a.e(f'v_permlane32_swap_b32 v{E+6}, v{E+7}')
    a.e(f'v_add_f32 v{E+6}, v{E+6}, v{E+7}')
    a.e(f'v_rcp_f32 v{E+6}, v{E+6}')
    for r in range(2, 4):
        a.e(f'v_add_f32_dpp v{vSm+r}, v{T0+r}, v{T0+r} row_ror:8 row_mask:0xf bank_mask:0x3')
    for r in range(4):
        a.e(f'v_add_f32_dpp v{vSm+r}, v{T1+r}, v{T1+r} row_ror:8 row_mask:0xf bank_mask:0xc')
    for r in range(4): a.e(f'v_mul_f32 v{vSm+r}, v{vSm+r}, v{E+6}')
    a.e(f'v_cvt_pk_bf16_f32 v{vSm}, v{vSm}, v{vSm+1}\nv_cvt_pk_bf16_f32 v{vSm+1}, v{vSm+2}, v{vSm+3}')
    lg.issue(f'ds_write_b64 v{vOw}, {vr(vSm,2)}', 'ow')
    G0, G1 = vQK, vAccV
    if MG:
        a.e(f'v_mov_b32 v{vSm+2}, v{vAccV}\nv_mov_b32 v{vSm+3}, v{vAccV+1}')
        zero16(G0)
        add64(a, sVM, sVM, imm=32 * 2048)
    else:
        a.e(f'v_lshrrev_b32 v{vVX}, 1, v{vL16}')
        zero16(G0)
        vm.issue(f'global_store_dwordx2 v{vVX}, {vr(vAccV,2)}, {sr(sVM,2)} {pubst}')
    a.e(f's_cmp_ge_u32 s{sStep}, 63\ns_cbranch_scc1 CH_DONE')
    wr(len(wq))
    zero16(G1)
    vm.wait('kdma')
    lg.wait('ow'); a.e('s_barrier')
    stamp(10)
    lg.issue(f'ds_read_b128 {vr(vVX,4)}, v{vOr}', 'o0'); lg.issue(f'ds_read_b128 {vr(vVX+4,4)}, v{vOr} offset:128', 'o1')
    add64(a, sKM, sKM, sKMex)
    if not MG: add64(a, sVM, sVM, imm=32 * 2048)
    a.e(f's_add_u32 s{sStep}, s{sStep}, 1')
    step_bases(a)
    lg.wait('o0')
    for i in range(16):
        T, kb = order[i]
        if i == 2: lg.wait('o1')
        G = (G0 if T < 4 else G1) + 4 * (T & 3)
        smf(a, G, vVX + 4 * kb, vr(slots[i], 8) if i < 8 else ar(aWO + (i - 8) * 8, 8))
        if 10 <= i <= 13:
            t = i - 10
            a.e(f'v_add_f32 v{G0+4*t}, v{G0+4*t}, v{G0+4*t+1}\nv_add_f32 v{G0+4*t+2}, v{G0+4*t+2}, v{G0+4*t+3}')
        if i == 14:
            a.e(f'v_cvt_pk_bf16_f32 v{G0}, v{G0}, v{G0+4}\nv_cvt_pk_bf16_f32 v{G0+1}, v{G0+8}, v{G0+12}')
        if i == 15:
            a.e(f'v_cvt_pk_bf16_f32 v{G0+2}, v{G0+2}, v{G0+6}\nv_cvt_pk_bf16_f32 v{G0+3}, v{G0+10}, v{G0+14}')
    for q in range(4 if o.get('tag4') else 1): a.e(f'v_and_or_b32 v{G0+q}, v{G0+q}, -2, s{sSent}')
    a.e(f'global_store_dwordx4 v{vPst}, {vr(G0,4)}, {sr(sPst0,2)} {st}')
    for t in range(4):
        a.e(f'v_add_f32 v{G1+4*t}, v{G1+4*t}, v{G1+4*t+1}\nv_add_f32 v{G1+4*t+2}, v{G1+4*t+2}, v{G1+4*t+3}')
    a.e(f'v_cvt_pk_bf16_f32 v{G1}, v{G1}, v{G1+4}\nv_cvt_pk_bf16_f32 v{G1+1}, v{G1+8}, v{G1+12}')
    a.e(f'v_cvt_pk_bf16_f32 v{G1+2}, v{G1+2}, v{G1+6}\nv_and_or_b32 v{G1}, v{G1}, -2, s{sSent}\nv_cvt_pk_bf16_f32 v{G1+3}, v{G1+10}, v{G1+14}')
    if o.get('tag4'):
        for q in range(1, 4): a.e(f'v_and_or_b32 v{G1+q}, v{G1+q}, -2, s{sSent}')
    a.e(f'global_store_dwordx4 v{vPst}, {vr(G1,4)}, {sr(sPst1,2)} {st}')
    stamp(11)
    stamp_collect()
    a.e(f'v_add_u32 v{vMA}, {L_KX}, v{vL16}')
    for i in range(8): a.e(f'ds_read_b128 {vr(vKX+4*i,4)}, v{vMA} offset:{1024*i}')
    a.e(f's_mov_b32 s{sSpin}, 0')
    PL = vMA + 8; RA = vS0
    for i in range(4): a.e(f'v_mov_b32 v{RA+i}, 0')
    if o['ack1']: a.e('s_waitcnt vmcnt(0)')
    stamp(0)
    def p1loads():
        a.e(f'global_load_dwordx4 {vr(PL,4)}, v{vL16}, {sr(sPld,2)} sc1\nglobal_load_dwordx4 {vr(PL+4,4)}, v{vL16}, {sr(sPld,2)} offset:1024 sc1')
    D1 = o.get('d1', 1)
    p1loads()
    a.e('s_waitcnt vmcnt(0)')
    a.label(L('P1W'))
    def tagchk():
        if o.get('tag4'):
            for q in range(4): a.e(f'v_bitop3_b32 v{RA+4+q}, v{PL+q}, v{PL+4+q}, s{sSent} bitop3:0x7e')
            a.e(f'v_or3_b32 v{RA+4}, v{RA+4}, v{RA+5}, v{RA+6}\nv_or_b32 v{RA+4}, v{RA+4}, v{RA+7}')
        else: a.e(f'v_bitop3_b32 v{RA+4}, v{PL}, v{PL+4}, s{sSent} bitop3:0x7e')
    tagchk()
    a.e(f'v_smfmac_f32_16x16x64_bf16 {vr(RA,4)}, {vr(vSel,4)}, {vr(PL,8)}, v{vSelI}')
    a.e(f'v_and_b32 v{RA+4}, 1, v{RA+4}\nv_cmp_ne_u32 vcc, 0, v{RA+4}\ns_cbranch_vccnz {L("P1R")}')
    a.e('s_nop 4')
    a.e(f'v_add_f32_dpp v{RA}, v{RA}, v{RA} row_ror:4 row_mask:0xf bank_mask:0xf\nv_add_f32_dpp v{RA+1}, v{RA+1}, v{RA+1} row_ror:4 row_mask:0xf bank_mask:0xf\ns_nop 0')
    a.e(f'v_add_f32_dpp v{RA}, v{RA}, v{RA} row_ror:8 row_mask:0xf bank_mask:0xf\nv_add_f32_dpp v{RA+1}, v{RA+1}, v{RA+1} row_ror:8 row_mask:0xf bank_mask:0xf')
    a.e(f's_mov_b64 exec, {sr(sMex,2)}')
    a.e(f'v_cvt_pk_bf16_f32 v{RA}, v{RA}, v{RA+1}')
    stamp(1)
    a.e(f'v_min_u32 v{RA}, -2, v{RA}')
    a.e(f'global_store_dword v{vMst}, v{RA}, {sr(sMst,2)} {st}\ns_mov_b64 exec, -1')
    if o['ack2']: a.e('s_waitcnt vmcnt(0)')
    stamp(2)
    a.e(f's_branch {L("STEP")}')
    a.label(L('P2R'))
    a.e('s_mov_b64 exec, vcc')
    p2loads()
    a.e('s_mov_b64 exec, -1')
    a.e(f's_add_u32 s{sSpin}, s{sSpin}, 1\ns_add_u32 s100, s100, 1\ns_cmp_gt_u32 s{sSpin}, {SPIN_MAX}\ns_cbranch_scc1 CH_ABORT')
    a.e(f's_waitcnt vmcnt({2*(D2-1)})')
    p2check(L("P2R"))
    a.e(f's_branch {L("P2OK")}')
    if MG:
        a.label(L('KVP'))
        if 'mark' in o: a.e(f's_lshl_b32 s97, s97, 6\ns_add_u32 s97, s97, s{sStep}')
        kv_poll(a, L('KVP2'), sT0)
        a.e(f's_branch {L("KVOK")}')
    a.label(L('P1R'))
    a.e('s_mov_b64 exec, vcc')
    p1loads()
    a.e('s_mov_b64 exec, -1')
    a.e(f's_add_u32 s{sSpin}, s{sSpin}, 1\ns_add_u32 s101, s101, 1\ns_cmp_gt_u32 s{sSpin}, {SPIN_MAX}\ns_cbranch_scc1 CH_ABORT')
    a.e(f's_waitcnt vmcnt({2*(D1-1)})')
    tagchk()
    a.e(f'v_and_b32 v{RA+4}, 1, v{RA+4}\nv_cmp_ne_u32 vcc, 0, v{RA+4}\ns_cbranch_vccnz {L("P1R")}')
    for i in range(4): a.e(f'v_mov_b32 v{RA+i}, 0')
    a.e(f's_branch {L("P1W")}')


def chain_preload(a):
    a.e('s_getpc_b64 s[18:19]')
    a.label('CH_PC')
    a.e('s_add_u32 s18, s18, CH_TABLE-CH_PC\ns_addc_u32 s19, s19, 0')
    a.e(f'v_mul_u32_u24 v127, {NCH*4}, v0')
    for q in range(5): a.e(f'global_load_dwordx4 {vr(4*q,4)}, v127, s[18:19] offset:{16*q}')

def gen_chain_body(a, pubst='', opts=None):
    o = opts or {}
    a.label('CHAIN')
    a.e(f's_lshl_b32 s{sR}, s{sHead}, 2\ns_add_u32 s{sR}, s{sR}, s{sWave}')
    a.e(f's_mov_b32 s{sMex}, 0x000f000f\ns_mov_b32 s{sMex+1}, 0x000f000f\ns_mov_b32 s{sHalf}, 0xff00ff00\ns_mov_b32 s{sHalf+1}, 0xff00ff00')
    a.e(f's_mov_b32 s{sC}, {f32bits(CSC)}')
    for j in range(4): a.e(f's_xor_b32 s{sJ+j}, s{sWave}, {j}\ns_lshl_b32 s{sJ+j}, s{sJ+j}, 11\ns_add_u32 s{sJM+j}, s{sJ+j}, {L_MX}')
    for i in range(4): a.e(f'v_mov_b32 v{20+i}, 0')
    a.e('v_mov_b32 v24, -1')
    a.e(f's_lshl_b32 s{sT0}, s{sHead}, 13\ns_add_u32 s{sT0}, s{sT0}, s{sJ}')
    a.e(f's_add_u32 s{sT1}, s{sT0}, {WS_KX}'); add64(a, sKX, sWs, sT1)
    a.e(f's_add_u32 s{sT1}, s{sT0}, {WS_VX}'); add64(a, sVX, sWs, sT1)
    a.e(f's_mov_b32 s{sT1}, {WS_KM - (L_XQ + 8*272)}\ns_mov_b32 s{sKMex}, {32*4096}\ns_cmp_ge_u32 s{sWave}, 2\ns_cselect_b32 s{sT1}, s{sT1}, {WS_QS - L_XQ}\ns_cselect_b32 s{sKMex}, s{sKMex}, 0')
    a.e(f's_lshl_b32 s{sT0}, s{sHead}, 12\ns_add_u32 s{sT0}, s{sT0}, s{sT1}'); add64(a, sKM, sWs, sT0)
    a.e(f's_lshl_b32 s{sT0}, s{sHead}, 11\ns_lshl_b32 s{sT1}, s{sWave}, 9\ns_add_u32 s{sT0}, s{sT0}, s{sT1}\ns_add_u32 s{sT0}, s{sT0}, {WS_VM}'); add64(a, sVM, sWs, sT0)
    a.e(f's_mul_i32 s{sT0}, s{sR}, {RS}')
    add64(a, sPld, sWs, sT0); add64(a, sPst0, sPld, imm=128 * RS)
    a.e(f's_lshl_b32 s{sT0}, s{sR}, 6\ns_add_u32 s{sT0}, s{sT0}, {WS_M+8192}'); add64(a, sMst, sWs, sT0)
    a.e(f's_and_b32 s{sT0}, s{sR}, 7\ns_lshl_b32 s{sT0}, s{sT0}, 7'); add64(a, sMld, sMem0, sT0)
    a.e('s_waitcnt vmcnt(0)')
    a.e(f'global_load_dwordx2 v[28:29], v18, {sr(sMld,2)}\nglobal_load_dwordx2 v[30:31], v18, {sr(sMld,2)} offset:16')
    for b in (sPld, sPst0):
        a.e(f'global_store_dwordx4 v{vL16}, v[20:23], {sr(b,2)} sc1\nglobal_store_dwordx4 v{vL16}, v[20:23], {sr(b,2)} offset:1024 sc1')
    a.e(f's_mov_b64 exec, {sr(sMex,2)}')
    for k in range(3):
        a.e(f'global_store_dword v{vMst}, v24, {sr(sMst,2)} sc1')
        add64(a, sMst, sMst, imm=8192)
    a.e('s_mov_b64 exec, -1')
    a.e(f's_lshl_b32 s{sT0}, s{sR}, 10\ns_add_u32 s{sT0}, s{sT0}, {WS_M}'); add64(a, sMld, sWs, sT0)
    a.e(f's_cmp_lt_u32 s{sR}, 8\ns_cselect_b64 s[{sMra}:{sMra+1}], -1, 0')
    a.e('s_waitcnt vmcnt(7)')
    for i in range(4): a.e(f'v_min_u32 v{28+i}, -2, v{28+i}')
    a.e(f's_mov_b64 exec, s[{sMra}:{sMra+1}]\nglobal_store_dwordx4 v{vL16}, v[28:31], {sr(sMld,2)} sc1\ns_mov_b64 exec, -1')
    MG = o.get('merged', 0); LD = 'sc1' if MG else ''
    if MG:
        a.e(f's_lshl_b32 s{sT0}, s{sHead}, 7\ns_add_u32 s{sT0}, s{sT0}, {WS_FL+FL_KV}'); add64(a, sFlKV, sWs, sT0); add64(a, sFlP, sFlKV, imm=FL_PROG-FL_KV)
        a.e(f's_mov_b32 s{sFlEx+1}, 0\ns_sub_u32 s{sVM}, s{sVM}, {32*2048}\ns_subb_u32 s{sVM+1}, s{sVM+1}, 0')
    def kv0(a):
        if MG:
            a.e(f'v_mov_b32 v{vZ}, 0\ns_mov_b32 s{sT2}, 1')
            kv_poll(a, 'CH_KV0', sT2, 24)
        a.e(f's_add_u32 s{sT0}, s{sJ}, {L_KX}\ns_mov_b32 m0, s{sT0}\ns_nop 0')
        a.e(f'global_load_lds_dwordx4 v{vL16}, {sr(sKX,2)} {LD}\nglobal_load_lds_dwordx4 v{vL16}, {sr(sKX,2)} offset:1024 {LD}')
        a.e(f's_add_u32 s{sT0}, s{sT0}, 8192\ns_mov_b32 m0, s{sT0}\ns_nop 0')
        a.e(f'global_load_lds_dwordx4 v{vL16}, {sr(sVX,2)} {LD}\nglobal_load_lds_dwordx4 v{vL16}, {sr(sVX,2)} offset:1024 {LD}')
        return 4
    def signal(a):
        a.e(f'v_mov_b32 v20, 8\nv_mov_b32 v21, 1\ns_cmp_eq_u32 s{sWave}, 0\ns_cselect_b64 exec, 1, 0')
        a.e(f'global_atomic_add v20, v21, {sr(sDbg,2)}\ns_mov_b64 exec, -1')
        return 0
    def rendezvous(a):
        if 'mark' in o: o['mark2'](a, 5) if 'mark2' in o else None
        a.e(f's_mov_b32 s{sSpin}, 0\nv_mov_b32 v20, 0')
        a.label('CH_RV')
        a.e(f'global_load_dwordx4 v[24:27], v20, {sr(sDbg,2)} sc1')
        a.e(f's_add_u32 s{sSpin}, s{sSpin}, 1\ns_cmp_gt_u32 s{sSpin}, {SPIN_MAX}\ns_cbranch_scc1 CH_ABORT')
        a.e('s_waitcnt vmcnt(0)')
        a.e(f'v_readfirstlane_b32 s{sT0}, v26\nv_readfirstlane_b32 s{sMode}, v25\ns_nop 1\ns_cmp_ge_u32 s{sT0}, 32\ns_cbranch_scc0 CH_RV')
        if MG: a.e(f'v_readfirstlane_b32 s{sT0}, v27\ns_nop 1\ns_cmp_eq_u32 s{sT0}, 0\ns_cbranch_scc1 CH_RV')
        n = kv0(a)
        a.e(f's_add_u32 s{sT0}, s{sJ}, {L_MX}\ns_mov_b32 m0, s{sT0}')
        a.e(f's_and_b32 s{sT0}, s{sR}, 31\ns_lshl_b32 s{sT0}, s{sT0}, 10\ns_add_u32 s{sT0}, s{sT0}, {WS_M}'); add64(a, sMld, sWs, sT0)
        for b in (sPld, sPst0):
            a.e(f'global_load_lds_dwordx4 v{vL16}, {sr(b,2)} sc1\nglobal_load_lds_dwordx4 v{vL16}, {sr(b,2)} offset:1024 sc1')
        a.e(f'global_load_lds_dwordx4 v{vL16}, {sr(sMld,2)} sc1')
        return n + 5
    gen_weight_load(a, {('rb', 0): signal, 13: rendezvous})
    for i in range(4): a.e(f'v_mov_b32 v{vZ+i}, 0')
    a.e(f's_mov_b32 s{sStep}, 0\ns_mov_b32 s100, 0\ns_mov_b32 s101, 0')
    step_bases(a)
    a.e('s_waitcnt vmcnt(0)\ns_barrier')
    a.e(f'v_add_u32 v{vMA}, {L_KX}, v{vL16}')
    for i in range(8): a.e(f'ds_read_b128 {vr(vKX+4*i,4)}, v{vMA} offset:{1024*i}')
    if o.get('stamps') or o.get('time'):
        a.e(('' if o.get('merged') else 's_memrealtime s[2:3]\n') + f's_memtime s[72:73]\ns_waitcnt lgkmcnt(0)\ns_mov_b32 s96, s72\ns_mov_b32 s97, s72\ns_mov_b32 s74, s72\ns_mov_b32 s76, s72')
        a.e(f'v_mov_b32 v20, {L_MISC}\nv_lshrrev_b32 v21, 2, v{vL16}\nv_add_u32 v20, v20, v21\nv_mov_b32 v21, 0\nds_write_b32 v20, v21 offset:64\ns_waitcnt lgkmcnt(0)\ns_barrier')
    if 'mark' in o: o['mark'](a, 6)
    a.e(f's_cmp_lg_u32 s{sMode}, 0\ns_cbranch_scc1 ENTRY_slow')
    gen_loop(a, '', 'fast', pubst, o)
    gen_loop(a, 'sc1', 'slow', pubst, o)

def emit_table(a, name, rows):
    a.e('.p2align 6')
    a.label(name)
    for r in rows:
        a.e('.long ' + ', '.join(hex(x) for x in r))

def chain_finish(a):
    a.e(f'v_lshrrev_b32 v{vSm}, 1, v{vL16}\nv_mov_b32 v{vSm+1}, 64')
    a.e(f'global_store_dwordx2 v{vSm}, {vr(vSm+2,2)}, {sr(sVM,2)} sc1\ns_waitcnt vmcnt(0)\ns_barrier')
    a.e(f's_cmp_eq_u32 s{sWave}, 0\ns_cselect_b64 exec, 1, 0\nglobal_store_dword v{vZ}, v{vSm+1}, {sr(sFlP,2)} sc1\ns_mov_b64 exec, -1')
```

```python
from gen_core import *
from gen_chain import *

WS_O   = WS_END1
WS_QB  = WS_O + 64 * 2 * 144 * 1024
WS_G   = WS_QB + 64 * 2 * 48 * 1024
WS_SCR = WS_G + 8192
WS_END = WS_SCR + 65536
assert WS_END <= (256 << 20)

sX, sWqkv, sWob, sGate, sOut = 74, 76, 78, 80, 82
def load_worker_ptrs(a):
    a.e(f's_load_dwordx2 s[{sX}:{sX+1}], s[0:1], {KA["x"]}\ns_load_dwordx4 s[{sWqkv}:{sWqkv+3}], s[0:1], {KA["wqkv"]}\ns_load_dwordx4 s[{sGate}:{sGate+3}], s[0:1], {KA["gate"]}')
def load_chain_ptrs(a):
    a.e(f's_load_dwordx4 s[4:7], s[0:1], {KA["Wq"]}\ns_load_dwordx4 s[8:11], s[0:1], {KA["Wv"]}\ns_load_dwordx2 s[12:13], s[0:1], {KA["mem0"]}\ns_load_dwordx2 s[14:15], s[0:1], {KA["dbg"]}\ns_load_dwordx2 s[16:17], s[0:1], {KA["ws"]}')

def lane_id(a, d):
    a.e(f'v_mbcnt_lo_u32_b32 v{d}, -1, 0\nv_mbcnt_hi_u32_b32 v{d}, -1, v{d}')

def gen_w1(a, st='', publish=None, tag='W1', preloop=None):
    L = lambda x: f'{tag}_{x}'
    sTask, sCombo, sStr, sMod, sSeg, sOstr, sTT, sI, sBuf = 26, 27, 28, 29, 30, 31, 32, 33, 34
    sOb, sXb, sXb2 = 36, 38, 40
    sNb = 42
    sOr = 44
    a.e(f's_lshr_b32 s{sCombo}, s{sTask}, 1\ns_and_b32 s{sSeg}, s{sTask}, 1\ns_and_b32 s{sT0}, s{sCombo}, 31\ns_lshr_b32 s{sT1}, s{sCombo}, 5')
    a.e(f's_mov_b32 s{sStr}, 8192\ns_mov_b32 s{sSRD+2}, {4<<20}\ns_mov_b32 s{sSRD+3}, 0x20000\ns_mov_b32 s{sMod}, 0')
    a.e(f's_mov_b32 s{sOstr}, {2*32*8192}\ns_mov_b32 s{sTT}, 4096')
    a.e(f's_lshl_b32 s{sT2}, s{sT0}, 13\ns_lshl_b32 s{sT3}, s{sWave}, 10')
    lk, lv, lq, lb, ld = [L(x) for x in ('k', 'v', 'q', 'b', 'dec')]
    a.e(f's_cmp_eq_u32 s{sT1}, 1\ns_cbranch_scc1 {lv}\ns_cmp_eq_u32 s{sT1}, 2\ns_cbranch_scc1 {lq}\ns_cmp_eq_u32 s{sT1}, 3\ns_cbranch_scc1 {lb}')
    a.e(f's_mov_b32 s{sSRD}, s{sWk}\ns_and_b32 s{sSRD+1}, s{sWk+1}, 0xffff\ns_add_u32 s{sT2}, s{sT2}, {WS_KX}\ns_branch {ld}')
    a.label(lv)
    a.e(f's_mov_b32 s{sSRD}, s{sWv}\ns_and_b32 s{sSRD+1}, s{sWv+1}, 0xffff\ns_add_u32 s{sT2}, s{sT2}, {WS_VX}\ns_mov_b32 s{sMod}, 1\ns_lshl_b32 s{sT3}, s{sT3}, 1\ns_mov_b32 s{sTT}, 1024\ns_branch {ld}')
    a.label(lq)
    a.e(f's_mov_b32 s{sSRD}, s{sWq}\ns_and_b32 s{sSRD+1}, s{sWq+1}, 0xffff\ns_add_u32 s{sT2}, s{sT2}, {WS_QX}\ns_branch {ld}')
    a.label(lb)
    a.e(f's_mov_b32 s{sSRD}, s{sWqkv}\ns_and_b32 s{sSRD+1}, s{sWqkv+1}, 0xffff\ns_mov_b32 s{sSRD+2}, {512*3072}\ns_mov_b32 s{sStr}, 3072')
    a.e(f's_lshl_b32 s{sT2}, s{sT0}, 12\ns_add_u32 s{sT2}, s{sT2}, {WS_QB}\ns_mov_b32 s{sOstr}, {2*2*48*1024}\ns_mov_b32 s{sTT}, {48*1024}')
    a.label(ld)
    a.e(f's_add_u32 s{sT2}, s{sT2}, s{sT3}\ns_lshr_b32 s{sT3}, s{sOstr}, 1\ns_mul_i32 s{sT3}, s{sT3}, s{sSeg}\ns_add_u32 s{sT2}, s{sT2}, s{sT3}')
    add64(a, sOr, sWs, sT2)
    add64(a, sOb, sWs, imm=WS_SCR)
    vl, vn, vg, vL = 1, 2, 3, 4
    vGo, vWr, vS0_, vS1_ = 5, 6, 7, 8
    vXo = 10
    vRd = 18
    vO2 = 9
    lane_id(a, vl)
    a.e(f'v_and_b32 v{vn}, 15, v{vl}\nv_lshrrev_b32 v{vg}, 4, v{vl}\nv_lshlrev_b32 v{vL}, 4, v{vl}')
    a.e(f'v_add_u32 v{vO2}, s{sTT}, v{vL}')
    a.e(f'v_lshlrev_b32 v{vGo}, 3, v{vg}\nv_mul_lo_u32 v{vGo}, v{vGo}, s{sStr}\nv_lshlrev_b32 v22, 4, v{vn}\nv_add_u32 v{vGo}, v{vGo}, v22\ns_lshl_b32 s{sT0}, s{sT0}, 8\nv_add_u32 v{vGo}, s{sT0}, v{vGo}')
    a.e(f'v_mov_b32 v{vS0_}, 0x05040100\nv_mov_b32 v{vS1_}, 0x07060302')
    a.e(f's_lshl_b32 s{sT0}, s{sWave}, 7\ns_mul_i32 s{sT0}, s{sT0}, s{sStr}')
    for u in range(4):
        for j in range(8):
            a.e(f'buffer_load_dwordx4 {vr(32+u*32+j*4,4)}, v{vGo}, {sr(sSRD,4)}, s{sT0} offen')
            a.e(f's_add_u32 s{sT0}, s{sT0}, s{sStr}')
        if u < 3: a.e(f's_mul_i32 s{sT1}, s{sStr}, 24\ns_add_u32 s{sT0}, s{sT0}, s{sT1}')
    a.e(f's_lshl_b32 s{sT0}, s{sWave}, 12')
    a.e(f'v_lshrrev_b32 v22, 2, v{vn}\nv_mul_u32_u24 v22, {32768+16}, v22\nv_and_b32 v23, 3, v{vn}\nv_lshlrev_b32 v23, 6, v23\nv_lshlrev_b32 v24, 8, v{vg}\nv_add3_u32 v22, v22, v23, v24')
    a.e(f's_cmp_eq_u32 s{sMod}, 1\ns_cselect_b64 vcc, -1, 0\nv_cndmask_b32 v{vWr}, v22, v{vL}, vcc\nv_add_u32 v{vWr}, s{sT0}, v{vWr}\nv_add_u32 v25, 65536, v{vWr}')
    for i in range(8):
        a.e(f's_and_b32 s{sT1}, s{sWave}, 1\ns_lshl_b32 s{sT1}, s{sT1}, 7\ns_add_u32 s{sT1}, s{sT1}, {i*16}\nv_xor_b32 v{vXo+i}, s{sT1}, v{vL}')
    for k in range(4):
        a.e(f'v_add_u32 v22, {4*k}, v{vg}\nv_xor_b32 v22, v22, v{vn}\nv_lshlrev_b32 v22, 4, v22\nv_lshl_add_u32 v{vRd+k}, v{vn}, 10, v22')
    lN, lJ = L('pN'), L('pJ')
    a.e(f's_cmp_eq_u32 s{sMod}, 1\ns_cbranch_scc1 {lN}')
    for mode in (0, 1):
        if mode == 1: a.label(lN)
        c = 0
        for u in range(4):
            a.e(f's_waitcnt vmcnt({8*(3-u)})')
            for t in range(8):
                tq = 160 + 4 * (c % 4); c += 1
                for D in range(4):
                    a.e(f'v_perm_b32 v{tq+D}, v{32+u*32+(2*D+1)*4+(t>>1)}, v{32+u*32+(2*D)*4+(t>>1)}, v{vS1_ if t&1 else vS0_}')
                if mode == 0: a.e(f'ds_write_b128 v{vWr}, {vr(tq,4)} offset:{(t>>2)*16384+u*1024+(t&3)*16}')
                else: a.e(f'ds_write_b128 v{vWr if t<4 else 25}, {vr(tq,4)} offset:{(t&3)*16384+u*1024}')
        if mode == 0: a.e(f's_branch {lJ}')
    a.label(lJ)
    a.e(f's_mov_b32 s{sT1}, {32768+16}\ns_cmp_eq_u32 s{sMod}, 1\ns_cselect_b32 s{sT1}, 32768, s{sT1}\ns_mul_i32 s{sT1}, s{sT1}, s{sWave}\nv_add_u32 v22, s{sT1}, v{vL}')
    a.e('s_waitcnt lgkmcnt(0)\ns_barrier')
    for ks in range(16):
        for tl in range(2):
            a.e(f'ds_read_b128 {ar((ks*2+tl)*4,4)}, v22 offset:{tl*16384+ks*1024}')
        if ks % 4 == 3: a.e('s_waitcnt lgkmcnt(4)')
    a.e('s_waitcnt lgkmcnt(0)\ns_barrier')
    a.e(f's_lshl_b32 s{sT0}, s{sSeg}, 15\ns_lshl_b32 s{sT1}, s{sWave}, 13\ns_add_u32 s{sT0}, s{sT0}, s{sT1}')
    add64(a, sXb, sX, sT0)
    def dma_setup():
        a.e(f's_lshl_b32 s{sT0}, s{sWave}, 13\ns_add_u32 s{sT0}, s{sT0}, s{sNb}\ns_mov_b32 m0, s{sT0}')
        add64(a, sXb2, sXb, imm=4096)
    def dma_op(i):
        r = []
        if i == 4: r.append(f's_add_u32 s{sT0}, m0, 4096\ns_mov_b32 m0, s{sT0}\ns_nop 0')
        r.append(f'global_load_lds_dwordx4 v{vXo+i}, {sr(sXb if i<4 else sXb2,2)} offset:{(i&3)*1024}')
        return '\n'.join(r)
    def dma_adv():
        a.e(f's_cmp_lt_u32 s{sI}, 29\ns_cselect_b32 s{sT1}, 65536, 0')
        add64(a, sXb, sXb, sT1)
        a.e(f's_add_u32 s{sNb}, s{sNb}, 32768\ns_cmp_eq_u32 s{sNb}, {3*32768}\ns_cselect_b32 s{sNb}, 0, s{sNb}')
    a.e(f's_mov_b32 s{sNb}, 0\ns_mov_b32 s{sI}, 0')
    for k in range(2):
        dma_setup(); a.e('s_nop 0')
        for i in range(8): a.e(dma_op(i))
        add64(a, sXb, sXb, imm=65536)
        a.e(f's_add_u32 s{sNb}, s{sNb}, 32768')
    a.e(f's_mov_b32 s{sBuf}, 0')
    if preloop: preloop(a)
    a.e('s_waitcnt vmcnt(8)\ns_barrier')
    RING = 8; FR = 32
    ACC = [64, 80]
    PK = 96
    def rd(f):
        ks, tt = (f % 32) >> 1, f & 1
        return f'ds_read_b128 {vr(FR+4*(f%RING),4)}, v{vRd+(ks&3)} offset:{tt*16384+(ks>>2)*256}'
    PRE = 6
    for f in range(PRE): a.e(rd(f))
    for mode in (0, 1):
        top = L(f'top{mode}')
        if mode == 0: a.e(f's_cmp_eq_u32 s{sMod}, 1\ns_cbranch_scc1 {L("top1")}')
        a.label(top)
        for ph in range(2):
            acc = ACC[ph]; prev = ACC[ph ^ 1]
            side = []
            if mode == 0:
                for tt in range(2):
                    for tl in range(2):
                        b = prev + (tt * 2 + tl) * 4
                        side.append(f'v_cvt_pk_bf16_f32 v{PK+tt*4+tl*2}, v{b}, v{b+1}\nv_cvt_pk_bf16_f32 v{PK+tt*4+tl*2+1}, v{b+2}, v{b+3}')
            else:
                for tl in range(2):
                    for tt in range(2):
                        b = prev + (tt * 2 + tl) * 4
                        side.append(f'v_cvt_pk_bf16_f32 v{PK+tl*4+tt*2}, v{b}, v{b+1}\nv_cvt_pk_bf16_f32 v{PK+tl*4+tt*2+1}, v{b+2}, v{b+3}')
            side.append(f'global_store_dwordx4 v{vL}, {vr(PK,4)}, {sr(sOb,2)} {st}')
            side.append(f'global_store_dwordx4 v{vO2}, {vr(PK+4,4)}, {sr(sOb,2)} {st}\ns_add_u32 s{sOb}, s{sOb}, s{sOstr}\ns_addc_u32 s{sOb+1}, s{sOb+1}, 0\ns_cmp_eq_u32 s{sI}, 0\ns_cselect_b64 {sr(sOb,2)}, {sr(sOr,2)}, {sr(sOb,2)}')
            for f in range(32):
                ks, tt = f >> 1, f & 1
                if f == 16:
                    a.e('s_waitcnt vmcnt(2)\ns_barrier')
                    if publish: publish(a, sI)
                    dma_setup()
                if f + PRE == 32:
                    a.e(f's_add_u32 s{sBuf}, s{sBuf}, 32768\ns_cmp_eq_u32 s{sBuf}, {3*32768}\ns_cselect_b32 s{sT1}, -2, 1\ns_cselect_b32 s{sBuf}, 0, s{sBuf}\ns_lshl_b32 s{sT1}, s{sT1}, 15')
                    for k in range(4): a.e(f'v_add_u32 v{vRd+k}, s{sT1}, v{vRd+k}')
                a.e(rd(f + PRE))
                a.e(f's_waitcnt lgkmcnt({PRE})')
                for tl in range(2):
                    d = acc + (tt * 2 + tl) * 4
                    W = ar((ks * 2 + tl) * 4, 4); X = vr(FR + 4 * (f % RING), 4)
                    A, B = (W, X) if mode == 0 else (X, W)
                    a.e(f'v_mfma_f32_16x16x32_bf16 {vr(d,4)}, {A}, {B}, {"0" if ks==0 else vr(d,4)}')
                if 4 <= f < 4 + 2 * len(side) and f % 2 == 0: a.e(side[(f - 4) // 2])
                if 16 <= f < 32 and f % 2 == 0: a.e(dma_op((f - 16) // 2))
            dma_adv()
            a.e(f's_add_u32 s{sI}, s{sI}, 1')
        a.e(f's_cmp_lt_u32 s{sI}, 32\ns_cbranch_scc1 {top}')
        a.e('s_nop 7')
        prev = ACC[1]
        for x in range(2):
            for y in range(2):
                tt, tl = (x, y) if mode == 0 else (y, x)
                b = prev + (tt * 2 + tl) * 4
                a.e(f'v_cvt_pk_bf16_f32 v{PK+x*4+y*2}, v{b}, v{b+1}\nv_cvt_pk_bf16_f32 v{PK+x*4+y*2+1}, v{b+2}, v{b+3}')
        a.e(f'global_store_dwordx4 v{vL}, {vr(PK,4)}, {sr(sOb,2)} {st}\nglobal_store_dwordx4 v{vO2}, {vr(PK+4,4)}, {sr(sOb,2)} {st}')
        if mode == 0: a.e(f's_branch {L("end")}')
    a.label(L('end'))
    a.e('s_waitcnt vmcnt(0) lgkmcnt(0)\ns_barrier')

def gen_gate(a, st=''):
    lane_id(a, 1)
    a.e('v_and_b32 v2, 15, v1\nv_lshrrev_b32 v3, 4, v1\nv_lshlrev_b32 v4, 8, v3\nv_lshl_add_u32 v5, v2, 10, v4')
    a.e(f's_lshl_b32 s{sT0}, s26, 14'); add64(a, 28, sX, sT0)
    for i in range(16):
        a.e(f'global_load_dwordx4 {vr(8+4*i,4)}, v5, s[28:29] offset:{16*i}')
    for i in range(16):
        a.e(f'global_load_dwordx4 {vr(72+4*i,4)}, v4, {sr(sGate,2)} offset:{16*i}')
    a.e('v_mov_b32 v6, 0\nv_mov_b32 v7, 0\ns_waitcnt vmcnt(0)')
    for i in range(64):
        a.e(f'v_dot2c_f32_bf16 v{6+(i&1)}, v{8+i}, v{72+i}')
    a.e('s_nop 2\nv_add_f32 v6, v6, v7\nv_mov_b32 v7, v6\ns_nop 1\nv_permlane16_swap_b32 v6, v7\nv_add_f32 v6, v6, v7\nv_mov_b32 v7, v6\ns_nop 1\nv_permlane32_swap_b32 v6, v7\nv_add_f32 v6, v6, v7')
    a.e(f'v_mul_f32 v6, {hex(f32bits(-math.log2(math.e)))}, v6\nv_exp_f32 v6, v6\ns_nop 0\nv_add_f32 v6, 1.0, v6\nv_rcp_f32 v6, v6')
    a.e(f's_lshl_b32 s{sT0}, s26, 6\ns_add_u32 s{sT0}, s{sT0}, {WS_G}'); add64(a, 28, sWs, sT0)
    a.e(f'v_lshlrev_b32 v2, 2, v2\ns_mov_b64 exec, 0xffff\nglobal_store_dword v2, v6, s[28:29] {st}\ns_mov_b64 exec, -1')

def gen_battn(a, st='', ld=''):
    CB = 0.25 * math.log2(math.e)
    lane_id(a, 1)
    a.e('v_and_b32 v2, 15, v1\nv_lshrrev_b32 v3, 4, v1')
    a.e(f's_lshr_b32 s27, s26, 4\ns_and_b32 s28, s26, 15\ns_lshl_b32 s29, s27, 4\nv_add_u32 v4, s29, v2')
    a.e(f's_lshl_b32 s{sT0}, s28, 10\ns_add_u32 s{sT0}, s{sT0}, {WS_QB}'); add64(a, 30, sWs, sT0)
    add64(a, 32, 30, imm=16 * 1024); add64(a, 34, 30, imm=32 * 1024)
    a.e(f's_mov_b32 s36, {48*1024}\nv_lshlrev_b32 v5, 8, v3')
    for w in range(8):
        a.e(f'v_subrev_u32 v6, {2*w}, v4\nv_max_i32 v6, 0, v6\nv_lshrrev_b32 v7, 4, v6\nv_mul_lo_u32 v7, v7, s36\nv_and_b32 v6, 15, v6\nv_lshl_add_u32 v6, v6, 4, v5\nv_add_u32 v{8+w}, v6, v7')
    a.e(f'global_load_dwordx4 v[16:19], v8, s[30:31] {ld}')
    for w in range(8): a.e(f'global_load_dwordx4 {vr(20+4*w,4)}, v{8+w}, s[32:33] {ld}')
    for w in range(8): a.e(f'global_load_dwordx4 {vr(52+4*w,4)}, v{8+w}, s[34:35] {ld}')
    add64(a, 38, sWs, imm=WS_G)
    a.e(f'v_lshlrev_b32 v6, 2, v4\nglobal_load_dword v84, v6, s[38:39] {ld}')
    for w in range(8): a.e(f'v_mov_b32 v{88+w}, 0')
    a.e('s_waitcnt vmcnt(9)')
    for i in range(4):
        for w in range(8): a.e(f'v_dot2c_f32_bf16 v{88+w}, v{16+i}, v{20+4*w+i}')
    a.e('s_nop 2')
    for w in range(8): a.e(f'v_mov_b32 v{96+w}, v{88+w}')
    a.e('s_nop 1')
    for w in range(8): a.e(f'v_permlane16_swap_b32 v{88+w}, v{96+w}')
    for w in range(8): a.e(f'v_add_f32 v{88+w}, v{88+w}, v{96+w}')
    a.e(f's_mov_b32 s36, {hex(f32bits(CB))}\nv_mov_b32 v104, {hex(f32bits(-1e9*math.log2(math.e)))}')
    for w in range(8): a.e(f'v_mul_f32 v{88+w}, s36, v{88+w}')
    for w in range(1, 8):
        a.e(f'v_cmp_le_u32 vcc, {2*w}, v4\ns_nop 1\nv_cndmask_b32 v{88+w}, v104, v{88+w}, vcc')
    a.e('v_max3_f32 v105, v88, v89, v90\nv_max3_f32 v106, v91, v92, v93\nv_max3_f32 v105, v105, v94, v95\nv_max_f32 v105, v105, v106')
    for w in range(8): a.e(f'v_sub_f32 v{88+w}, v{88+w}, v105')
    for w in range(8): a.e(f'v_exp_f32 v{88+w}, v{88+w}')
    a.e('s_nop 0\nv_add_f32 v105, v88, v89\nv_add_f32 v106, v90, v91\nv_add_f32 v107, v92, v93\nv_add_f32 v108, v94, v95\nv_add_f32 v105, v105, v106\nv_add_f32 v107, v107, v108\nv_add_f32 v105, v105, v107\nv_rcp_f32 v105, v105')
    a.e('s_waitcnt vmcnt(0)\nv_sub_f32 v84, 1.0, v84\nv_mul_f32 v105, v105, v84')
    for w in range(8):
        for i in range(4):
            s_ = 52 + 4 * w + i
            a.e(f'v_lshlrev_b32 v106, 16, v{s_}\nv_and_b32 v107, 0xffff0000, v{s_}')
            if w == 0: a.e(f'v_mul_f32 v{112+2*i}, v88, v106\nv_mul_f32 v{113+2*i}, v88, v107')
            else: a.e(f'v_fmac_f32 v{112+2*i}, v{88+w}, v106\nv_fmac_f32 v{113+2*i}, v{88+w}, v107')
    for i in range(8): a.e(f'v_mul_f32 v{112+i}, v{112+i}, v105')
    for i in range(4): a.e(f'v_cvt_pk_bf16_f32 v{120+i}, v{112+2*i}, v{113+2*i}')
    a.e(f's_mul_i32 s{sT0}, s27, {144*1024}\ns_add_u32 s28, s28, 128\ns_lshl_b32 s28, s28, 10\ns_add_u32 s{sT0}, s{sT0}, s28\ns_add_u32 s{sT0}, s{sT0}, {WS_O}'); add64(a, 30, sWs, sT0)
    a.e(f'v_lshlrev_b32 v6, 4, v1\nglobal_store_dwordx4 v6, v[120:123], s[30:31] {st}')

def w3_consts(a, B0):
    lane_id(a, B0 + 4)
    a.e(f'v_lshlrev_b32 v{B0}, 4, v{B0+4}\nv_lshlrev_b32 v{B0+2}, 3, v{B0+4}\nv_and_b32 v{B0+5}, 15, v{B0+4}\nv_lshrrev_b32 v{B0+6}, 4, v{B0+4}')
    a.e(f'v_lshlrev_b32 v{B0+3}, 2, v{B0+5}')
    a.e(f'v_lshrrev_b32 v{B0+7}, 2, v{B0+5}\nv_lshlrev_b32 v{B0+7}, 1, v{B0+7}\nv_and_b32 v{B0+8}, 1, v{B0+5}\nv_add_u32 v{B0+7}, v{B0+7}, v{B0+8}\nv_mul_u32_u24 v{B0+7}, 272, v{B0+7}\nv_lshl_add_u32 v{B0+1}, v{B0+6}, 4, v{B0+7}')
    for r in range(4):
        a.e(f'v_lshl_add_u32 v{B0+7}, v{B0+6}, 2, {r}\nv_cmp_le_u32 s[{84+2*r}:{85+2*r}], v{B0+7}, v{B0+5}')

def gen_w3(a, B0, st='', ld='', wait=None):
    L16, KMO, L8, N4 = B0, B0 + 1, B0 + 2, B0 + 3
    Q = B0 + 4; K = Q + 32; KM = K + 32; V = KM + 16; VM = V + 32; G = VM + 10
    S = G + 2
    T = S + 20
    P = T + 8
    O = Q
    end = P + 12
    a.e(f's_lshl_b32 s{sT0}, s27, 5\ns_add_u32 s{sT0}, s{sT0}, s28')
    a.e(f's_lshl_b32 s{sT1}, s{sT0}, 13\ns_add_u32 s{sT1}, s{sT1}, {WS_QX+4096}'); add64(a, 30, sWs, sT1)
    a.e(f's_lshl_b32 s{sT1}, s{sT0}, 13\ns_add_u32 s{sT1}, s{sT1}, {WS_KX+4096}'); add64(a, 32, sWs, sT1)
    a.e(f's_lshl_b32 s{sT1}, s{sT0}, 13\ns_add_u32 s{sT1}, s{sT1}, {WS_VX+4096}'); add64(a, 34, sWs, sT1)
    a.e(f's_lshl_b32 s{sT1}, s{sT0}, 12\ns_add_u32 s{sT1}, s{sT1}, {WS_KM}'); add64(a, 36, sWs, sT1)
    a.e(f's_lshl_b32 s{sT1}, s{sT0}, 11\ns_add_u32 s{sT1}, s{sT1}, {WS_VM}'); add64(a, 38, sWs, sT1)
    a.e(f's_lshl_b32 s{sT1}, s27, 7\ns_add_u32 s{sT1}, s{sT1}, {WS_G}'); add64(a, 40, sWs, sT1)
    for i in range(8): a.e(f'global_load_dwordx4 {vr(Q+4*i,4)}, v{L16}, s[30:31] offset:{1024*i-4096} {ld}')
    for i in range(8): a.e(f'global_load_dwordx4 {vr(K+4*i,4)}, v{L16}, s[32:33] offset:{1024*i-4096} {ld}')
    for i in range(8): a.e(f'global_load_dwordx4 {vr(V+4*i,4)}, v{L16}, s[34:35] offset:{1024*i-4096} {ld}')
    for qt in range(2): a.e(f'global_load_dword v{G+qt}, v{N4}, s[40:41] offset:{64*qt} {ld}')
    a.e(f's_mul_i32 s{sT0}, s27, {2*144*1024}\ns_lshl_b32 s{sT1}, s28, 12\ns_add_u32 s{sT0}, s{sT0}, s{sT1}\ns_add_u32 s{sT0}, s{sT0}, {WS_O}'); add64(a, 30, sWs, sT0)
    add64(a, 32, 30, imm=144 * 1024)
    a.e(f's_mov_b32 s42, {hex(f32bits(CSC))}\nv_mov_b32 v{VM+8}, 0\nv_mov_b32 v{T+7}, 0xff800000')
    a.e('s_waitcnt vmcnt(10)')
    Sm = [S, S + 8]; Sx = {(0, 0): S + 4, (1, 0): S + 12, (1, 1): S + 16}
    for ks in range(4):
        for (qt, kt), d in Sx.items():
            a.e(f'v_mfma_f32_16x16x32_bf16 {vr(d,4)}, {vr(K+16*kt+4*ks,4)}, {vr(Q+16*qt+4*ks,4)}, {"0" if ks==0 else vr(d,4)}')
    if wait: wait(a)
    for i in range(4): a.e(f'global_load_dwordx4 {vr(KM+4*i,4)}, v{KMO}, s[36:37] offset:{64*i} {ld}')
    for i in range(4): a.e(f'global_load_dwordx2 {vr(VM+2*i,2)}, v{L8}, s[38:39] offset:{512*i} {ld}')
    a.e('s_waitcnt vmcnt(4)')
    for ks in range(4):
        for qt in range(2):
            a.e(f'v_mfma_f32_16x16x32_bf16 {vr(Sm[qt],4)}, {vr(KM+4*ks,4)}, {vr(Q+16*qt+4*ks,4)}, {"0" if ks==0 else vr(Sm[qt],4)}')
    for qt in range(2):
        d = Sx[(qt, qt)]
        for r in range(4): a.e(f'v_cndmask_b32 v{d+r}, v{T+7}, v{d+r}, s[{84+2*r}:{85+2*r}]')
    vals = {0: [Sm[0], Sm[0] + 1] + [Sx[(0, 0)] + r for r in range(4)],
            1: [Sm[1], Sm[1] + 1] + [Sx[(1, 0)] + r for r in range(4)] + [Sx[(1, 1)] + r for r in range(4)]}
    def allred(op, x, y):
        for sw in ('v_permlane16_swap_b32', 'v_permlane32_swap_b32'):
            a.e(f'v_mov_b32 v{T+2}, v{x}\nv_mov_b32 v{T+3}, v{y}\ns_nop 0\n{sw} v{x}, v{T+2}\n{sw} v{y}, v{T+3}\n{op} v{x}, v{x}, v{T+2}\n{op} v{y}, v{y}, v{T+3}')
    for qt in range(2):
        v = vals[qt]; m = T + qt
        a.e(f'v_max3_f32 v{m}, v{v[2]}, v{v[3]}, v{v[4]}')
        rest = v[5:] + v[:2]
        while len(rest) >= 2:
            a.e(f'v_max3_f32 v{m}, v{m}, v{rest[0]}, v{rest[1]}'); rest = rest[2:]
        if rest: a.e(f'v_max_f32 v{m}, v{m}, v{rest[0]}')
    allred('v_max_f32', T, T + 1)
    for qt in range(2):
        a.e(f'v_mul_f32 v{T+qt}, s42, v{T+qt}')
        for x in vals[qt]: a.e(f'v_fma_f32 v{x}, v{x}, s42, -v{T+qt}')
        for x in vals[qt]: a.e(f'v_exp_f32 v{x}, v{x}')
    for qt in range(2):
        v = vals[qt]; b = P + 6 * qt
        a.e(f'v_cvt_pk_bf16_f32 v{b}, v{v[2]}, v{v[3]}\nv_cvt_pk_bf16_f32 v{b+1}, v{v[4]}, v{v[5]}')
        if qt == 0: a.e(f'v_mov_b32 v{b+2}, 0\nv_mov_b32 v{b+3}, 0')
        else: a.e(f'v_cvt_pk_bf16_f32 v{b+2}, v{v[6]}, v{v[7]}\nv_cvt_pk_bf16_f32 v{b+3}, v{v[8]}, v{v[9]}')
        a.e(f'v_cvt_pk_bf16_f32 v{b+4}, v{v[0]}, v{v[1]}\nv_mov_b32 v{b+5}, 0')
    a.e(f'v_mov_b32 v{T+4}, 0\nv_mov_b32 v{T+5}, v{P+4}\nv_mov_b32 v{T+6}, 0\nv_mov_b32 v{T+7}, v{P+10}')
    for qt in range(2):
        v = vals[qt]; m = T + qt
        a.e(f'v_add_f32 v{m}, v{v[0]}, v{v[1]}')
        for x in v[2:]: a.e(f'v_add_f32 v{m}, v{m}, v{x}')
    a.e('s_waitcnt vmcnt(0)')
    for qt in range(2):
        for t in range(8):
            d = O + (qt * 8 + t) * 4
            a.e(f'v_mfma_f32_16x16x32_bf16 {vr(d,4)}, {vr(V+4*t,4)}, {vr(P+6*qt,4)}, 0')
        if qt == 0: allred('v_add_f32', T, T + 1)
        for t in range(8):
            d = O + (qt * 8 + t) * 4
            Bm = vr(P + 6 * qt + 4, 2) if t % 2 == 0 else vr(T + 4 + 2 * qt, 2)
            a.e(f'v_mfma_f32_16x16x16_bf16 {vr(d,4)}, {vr(VM+(t&~1),2)}, {Bm}, {vr(d,4)}')
        if qt == 0:
            a.e(f'v_rcp_f32 v{T}, v{T}\nv_rcp_f32 v{T+1}, v{T+1}\ns_nop 0\nv_mul_f32 v{T}, v{T}, v{G}\nv_mul_f32 v{T+1}, v{T+1}, v{G+1}')
    for qt in range(2):
        for kp in range(4):
            d = O + (qt * 8 + 2 * kp) * 4
            if qt == 1 and kp == 3: a.e('s_nop 1')
            for i in range(8): a.e(f'v_mul_f32 v{d+i}, v{d+i}, v{T+qt}')
            for i in range(4): a.e(f'v_cvt_pk_bf16_f32 v{d+i}, v{d+2*i}, v{d+2*i+1}')
            a.e(f'global_store_dwordx4 v{L16}, {vr(d,4)}, s[{30+2*qt}:{31+2*qt}] offset:{1024*kp} {st}')
    return end

W4_LRED = 131072
def w4_load_weights(a):
    lane_id(a, 1)
    a.e('v_lshrrev_b32 v2, 4, v1\nv_lshrrev_b32 v3, 2, v1\nv_and_b32 v3, 3, v3\nv_and_b32 v4, 3, v1\nv_lshlrev_b32 v4, 4, v4')
    a.e('v_lshlrev_b32 v5, 15, v2\nv_lshl_add_u32 v5, v3, 13, v5\nv_add_u32 v5, v5, v4')
    a.e('v_lshlrev_b32 v6, 13, v2\nv_lshl_add_u32 v6, v3, 10, v6\nv_add_u32 v6, v6, v4')
    a.e(f's_lshl_b32 s{sT0}, s{sWave}, 15\nv_lshlrev_b32 v7, 8, v2\nv_lshl_add_u32 v7, v3, 6, v7\nv_lshrrev_b32 v8, 1, v4\nv_add3_u32 v7, v7, v8, s{sT0}')
    a.e(f's_lshl_b32 s{sT0}, s26, 6'); add64(a, 28, sWo, sT0); add64(a, 30, sWob, sT0)
    a.e(f's_mul_i32 s32, s{sWave}, 36')
    for c0 in range(0, 36, 12):
        for kl in range(c0, c0 + 12):
            a.e(f's_add_u32 s33, s32, {kl}\ns_lshr_b32 s34, s33, 2\ns_lshl_b32 s34, s34, 17\ns_and_b32 s35, s33, 3\ns_lshl_b32 s35, s35, 11\ns_add_u32 s34, s34, s35')
            a.e(f's_sub_u32 s35, s33, 128\ns_lshl_b32 s35, s35, 15\ns_cmp_lt_u32 s33, 128\ns_cselect_b32 s34, s34, s35\ns_cselect_b32 s36, s28, s30\ns_cselect_b32 s37, s29, s31\ns_cselect_b32 s35, 1, 4\ns_cselect_b64 vcc, -1, 0')
            a.e(f's_lshl_b32 s35, s35, 10\ns_add_u32 s36, s36, s34\ns_addc_u32 s37, s37, 0\ns_add_u32 s38, s36, s35\ns_addc_u32 s39, s37, 0\nv_cndmask_b32 v9, v6, v5, vcc')
            a.e(f's_lshl_b32 s34, s{sWave}, 15\ns_add_u32 s34, s34, {(kl-c0)*2048}\ns_mov_b32 m0, s34\ns_add_u32 s34, s34, 1024')
            a.e('global_load_lds_dwordx4 v9, s[36:37]\ns_mov_b32 m0, s34\ns_nop 0\nglobal_load_lds_dwordx4 v9, s[38:39]')
        a.e('s_waitcnt vmcnt(0)')
        for kl in range(c0, c0 + 12):
            for tl in range(2):
                for hf in range(2):
                    i = (kl * 2 + tl) * 4 + hf * 2
                    dst = ar(i, 2) if i < 256 else vr(224 + i - 256, 2)
                    a.e(f'ds_read_b64_tr_b16 {dst}, v7 offset:{(kl-c0)*2048+hf*1024+tl*32}')
            if kl % 3 == 2: a.e('s_waitcnt lgkmcnt(4)')
        a.e('s_waitcnt lgkmcnt(0)')

def w4_consts(a):
    lane_id(a, 4)
    a.e(f'v_lshlrev_b32 v0, 4, v4\ns_lshl_b32 s{sT0}, s{sWave}, 11\ns_add_u32 s{sT0}, s{sT0}, {W4_LRED}\nv_add_u32 v1, s{sT0}, v0')
    a.e(f's_and_b32 s{sT1}, s{sWave}, 1\ns_lshr_b32 s{sT2}, s{sWave}, 1\ns_lshl_b32 s{sT0}, s{sT1}, 10\ns_lshl_b32 s{sT3}, s{sT2}, 3\ns_add_u32 s{sT0}, s{sT0}, s{sT3}\ns_add_u32 s{sT0}, s{sT0}, {W4_LRED}\nv_add_u32 v2, s{sT0}, v0')
    a.e(f'v_and_b32 v5, 15, v4\nv_lshrrev_b32 v6, 4, v4\nv_lshlrev_b32 v5, 10, v5\nv_lshl_add_u32 v3, v6, 3, v5')
    a.e(f's_lshl_b32 s{sT1}, s{sT1}, 5\ns_lshl_b32 s{sT2}, s{sT2}, 2\ns_add_u32 s{sT0}, s{sT1}, s{sT2}\ns_lshl_b32 s{sT1}, s26, 6\ns_add_u32 s{sT0}, s{sT0}, s{sT1}\nv_add_u32 v3, s{sT0}, v3')

def gen_w4_tile(a, ld=''):
    ACC = 8; FR = 32
    a.e(f's_mul_i32 s{sT0}, s27, {144*1024}\ns_mul_i32 s{sT1}, s{sWave}, {36*1024}\ns_add_u32 s{sT0}, s{sT0}, s{sT1}\ns_add_u32 s{sT0}, s{sT0}, {WS_O+4096}')
    add64(a, 28, sWs, sT0)
    for kl in range(36):
        if kl % 8 == 0 and kl > 0: add64(a, 28, 28, imm=8192)
        a.e(f'global_load_dwordx4 {vr(FR+4*kl,4)}, v0, s[28:29] offset:{(kl%8)*1024-4096} {ld}')
    a.e(f's_lshl_b32 s{sT0}, s27, 14'); add64(a, 28, sOut, sT0)
    for kl in range(36):
        a.e(f's_waitcnt vmcnt({35-kl})')
        for tl in range(2):
            i = (kl * 2 + tl) * 4
            W = ar(i, 4) if i < 256 else vr(224 + i - 256, 4)
            d = ACC + tl * 4
            a.e(f'v_mfma_f32_16x16x32_bf16 {vr(d,4)}, {W}, {vr(FR+4*kl,4)}, {"0" if kl==0 else vr(d,4)}')
    a.e('s_nop 6')
    for q in range(2): a.e(f'ds_write_b128 v1, {vr(ACC+4*q,4)} offset:{1024*q}')
    a.e('s_waitcnt lgkmcnt(0)\ns_barrier')
    for q in range(4): a.e(f'ds_read_b64 {vr(ACC+2*q,2)}, v2 offset:{2048*q}')
    a.e('s_waitcnt lgkmcnt(0)')
    for i in range(2):
        a.e(f'v_add_f32 v{ACC+i}, v{ACC+i}, v{ACC+2+i}\nv_add_f32 v{ACC+4+i}, v{ACC+4+i}, v{ACC+6+i}')
    for i in range(2): a.e(f'v_add_f32 v{ACC+i}, v{ACC+i}, v{ACC+4+i}')
    a.e(f'v_cvt_pk_bf16_f32 v{ACC}, v{ACC}, v{ACC+1}')
    a.e(f'global_store_dword v3, v{ACC}, s[28:29]')
```

```python
import sys, json
from gen_work import *
from gen_v1 import NAME, HDR, kstart, kdesc

WSPIN = 3000000
def ticket(a, off, dst, per_wave=False, offreg=None):
    src = f's{offreg}' if offreg is not None else str(off)
    if per_wave:
        a.e(f'v_mov_b32 v{per_wave}, {src}\nv_mov_b32 v{per_wave+1}, 1\ns_mov_b64 exec, 1\nglobal_atomic_add v{per_wave+2}, v{per_wave}, v{per_wave+1}, {sr(sDbg,2)} sc0\ns_mov_b64 exec, -1\ns_waitcnt vmcnt(0)\nv_readfirstlane_b32 s{dst}, v{per_wave+2}\ns_nop 1')
        return
    T = 4
    lab = a.newlabel('tk')
    a.e(f'v_mov_b32 v{T}, {src}\nv_mov_b32 v{T+1}, 1\nv_mov_b32 v{T+2}, {L_MISC}\ns_cmp_lg_u32 s{sWave}, 0\ns_cbranch_scc1 {lab}')
    a.e(f's_mov_b64 exec, 1\nglobal_atomic_add v{T+3}, v{T}, v{T+1}, {sr(sDbg,2)} sc0\ns_waitcnt vmcnt(0)\nds_write_b32 v{T+2}, v{T+3}\ns_mov_b64 exec, -1\ns_waitcnt lgkmcnt(0)')
    a.label(lab)
    a.e(f's_barrier\nds_read_b32 v{T+3}, v{T+2}\ns_waitcnt lgkmcnt(0)\nv_readfirstlane_b32 s{dst}, v{T+3}\ns_barrier')

def signal(a, base, off):
    a.e(f'v_mov_b32 v4, {off}\nv_mov_b32 v5, 1\ns_cmp_eq_u32 s{sWave}, 0\ns_cselect_b64 exec, 1, 0\nglobal_atomic_add v4, v5, {sr(base,2)}\ns_mov_b64 exec, -1')

def wait_ge(a, base, off, val, t=4, wg=True, sleep=4, valreg=None, offreg=None):
    lab = a.newlabel('wt'); done = a.newlabel('wd')
    a.e(f'v_mov_b32 v{t}, {("s"+str(offreg)) if offreg is not None else off}\ns_mov_b32 s{sSpin}, 0')
    if wg: a.e(f's_cmp_lg_u32 s{sWave}, 0\ns_cbranch_scc1 {done}')
    a.label(lab)
    a.e(f'global_load_dword v{t+1}, v{t}, {sr(base,2)} sc1\ns_add_u32 s{sSpin}, s{sSpin}, 1\ns_cmp_gt_u32 s{sSpin}, {WSPIN}\ns_cbranch_scc1 CH_EXIT')
    a.e(f's_waitcnt vmcnt(0)\nv_readfirstlane_b32 s{sT0}, v{t+1}\ns_nop 1\ns_cmp_ge_u32 s{sT0}, {("s"+str(valreg)) if valreg is not None else val}\ns_cbranch_scc1 {done}\ns_sleep {sleep}\ns_branch {lab}')
    a.label(done)
    if wg: a.e('s_barrier')

def mark(a, k, o, t=250):
    if not o.get('time'): return
    a.e(f's_memrealtime s[92:93]\ns_waitcnt lgkmcnt(0)\ns_sub_u32 s92, s92, s94\nv_mov_b32 v{t}, s92\nv_mov_b32 v{t+1}, s96\ns_cmp_eq_u32 s{sWave}, 0\ns_cselect_b64 exec, 1, 0\nglobal_store_dword v{t+1}, v{t}, {sr(sWs,2)} offset:{4*k}\ns_mov_b64 exec, -1')

def build(opts=None):
    o = dict(merged=1); o.update(opts or {})
    a = Asm(); kstart(a, NAME + '_kernel')
    a.e('s_cmp_ge_u32 s2, 256\ns_cbranch_scc1 CH_EXIT')
    load_chain_ptrs(a); load_worker_ptrs(a)
    if o.get('time'): a.e('s_memrealtime s[94:95]\ns_lshl_b32 s96, s2, 6\ns_add_u32 s96, s96, 0x1E0000\ns_mov_b32 s97, 0')
    a.e(f's_getreg_b32 s{sXcc}, hwreg(HW_REG_XCC_ID)\ns_and_b32 s{sXcc}, s{sXcc}, 15')
    a.e(f'v_lshrrev_b32 v1, 6, v0\nv_lshlrev_b32 v121, 6, v0\nv_readfirstlane_b32 s{sWave}, v1')
    a.e(f's_mov_b32 s{sMode}, 0\ns_cmp_eq_u32 s{sXcc}, {o.get("pref",0)}\ns_cbranch_scc0 WORK')
    a.label('TAKE')
    chain_preload(a)
    a.e('s_getpc_b64 s[52:53]')
    a.label('PT_PC')
    a.e('s_add_u32 s52, s52, CHAIN-PT_PC\ns_addc_u32 s53, s53, 0\nglobal_load_dword v120, v121, s[52:53]')
    a.e('s_waitcnt lgkmcnt(0)')
    a.e(f'v_mov_b32 v122, 0\nv_mov_b32 v123, 1\nv_mov_b32 v125, {L_MISC}')
    a.e(f's_cmp_lg_u32 s{sWave}, 0\ns_cbranch_scc1 TK3')
    a.e(f's_mov_b64 exec, 1\nglobal_atomic_add v124, v122, v123, {sr(sDbg,2)} sc0\ns_waitcnt vmcnt(0)\nds_write_b32 v125, v124')
    a.e(f's_cmp_eq_u32 s{sMode}, 0\ns_cbranch_scc1 TK4\nv_mov_b32 v122, 4\nglobal_atomic_or v122, v123, {sr(sDbg,2)}\ns_waitcnt vmcnt(0)')
    a.label('TK4')
    a.e('s_mov_b64 exec, -1\ns_waitcnt lgkmcnt(0)')
    a.label('TK3')
    a.e(f's_barrier\nds_read_b32 v124, v125\ns_waitcnt lgkmcnt(0)\nv_readfirstlane_b32 s{sHead}, v124\ns_barrier\ns_cmp_ge_u32 s{sHead}, 32\ns_cbranch_scc0 CHAIN')
    a.e(f's_waitcnt vmcnt(0)\ns_cmp_eq_u32 s{sMode}, 0\ns_cbranch_scc0 STAFFED')
    a.label('WORK')
    a.e('s_waitcnt lgkmcnt(0)')
    add64(a, 84, sWs, imm=WS_FL)
    a.label('PH1')
    ticket(a, DB_Q1, 26)
    a.e('s_cmp_ge_u32 s26, 224\ns_cbranch_scc1 PH1_END')
    a.e('s_cmp_lg_u32 s26, 0\ns_cbranch_scc1 PH1_NOINIT')
    lane_id(a, 1)
    a.e(f'v_lshlrev_b32 v1, 4, v1\ns_lshl_b32 s{sT0}, s{sWave}, 12\nv_add_u32 v1, s{sT0}, v1\nv_mov_b32 v8, 0\nv_mov_b32 v9, 0\nv_mov_b32 v10, 0\nv_mov_b32 v11, 0')
    for k in range(4): a.e(f'global_store_dwordx4 v1, v[8:11], s[84:85] offset:{1024*k} sc1')
    a.e('s_waitcnt vmcnt(0)\ns_barrier')
    signal(a, sDbg, DB_INIT)
    a.label('PH1_NOINIT')
    a.e('s_cmp_ge_u32 s26, 216\ns_cbranch_scc1 PH1_GATE')
    a.e(f's_lshr_b32 s{sT0}, s26, 1\ns_and_b32 s{sT1}, s{sT0}, 31\ns_lshl_b32 s{sT1}, s{sT1}, 7\ns_lshr_b32 s{sT0}, s{sT0}, 5\ns_lshl_b32 s{sT2}, s{sT0}, 3\ns_add_u32 s{sT1}, s{sT1}, s{sT2}\ns_and_b32 s{sT2}, s26, 1\ns_lshl_b32 s{sT2}, s{sT2}, 2\ns_add_u32 s{sT1}, s{sT1}, s{sT2}')
    a.e(f'v_mov_b32 v26, s{sT1}\ns_cmp_lt_u32 s{sT0}, 2\ns_cselect_b32 s86, 1, 0\ns_cmp_eq_u32 s{sWave}, 0\ns_cselect_b32 s86, s86, 0\ns_mov_b32 s87, 0')
    def publish(a, sI):
        a.e(f's_sub_u32 s{sT1}, s{sI}, 1\ns_max_i32 s{sT1}, s{sT1}, 0\nv_mov_b32 v27, s{sT1}\ns_mov_b64 exec, s[86:87]\nglobal_store_dword v26, v27, s[84:85] sc1\ns_mov_b64 exec, -1')
    def preloop(a):
        wait_ge(a, sDbg, DB_INIT, 1, t=28, wg=False, sleep=2)
    gen_w1(a, 'sc1', publish, preloop=preloop)
    a.e('v_mov_b32 v27, 32\ns_mov_b64 exec, s[86:87]\nglobal_store_dword v26, v27, s[84:85] sc1\ns_mov_b64 exec, -1')
    a.e('s_branch PH1_DONE')
    a.label('PH1_GATE')
    a.e(f's_sub_u32 s26, s26, 216\ns_lshl_b32 s26, s26, 4\ns_lshl_b32 s{sT0}, s{sWave}, 2\ns_add_u32 s26, s26, s{sT0}\ns_add_u32 s43, s26, 4')
    a.label('PH1_GL')
    gen_gate(a, 'sc1')
    a.e('s_add_u32 s26, s26, 1\ns_cmp_lt_u32 s26, s43\ns_cbranch_scc1 PH1_GL')
    a.e('s_waitcnt vmcnt(0)\ns_barrier')
    a.label('PH1_DONE')
    signal(a, sDbg, DB_D1)
    a.e('s_branch PH1')
    a.label('PH1_END')
    mark(a, 0, o)
    a.e(f'v_mov_b32 v125, {L_MISC}\nv_mov_b32 v2, 0\ns_mov_b32 s{sSpin}, 0\ns_mov_b32 s44, 0')
    a.e(f's_cmp_lg_u32 s{sWave}, 0\ns_cbranch_scc1 ST_DEC')
    a.label('ST_POLL')
    a.e(f'global_load_dword v3, v2, {sr(sDbg,2)} sc1\ns_waitcnt vmcnt(0)\nv_readfirstlane_b32 s{sT0}, v3\ns_nop 1\ns_cmp_ge_u32 s{sT0}, 32\ns_cbranch_scc1 ST_WR')
    a.e(f's_sleep 8\ns_add_u32 s{sSpin}, s{sSpin}, 1\ns_cmp_lt_u32 s{sSpin}, 100\ns_cbranch_scc1 ST_POLL\ns_mov_b32 s44, 1')
    a.label('ST_WR')
    a.e('v_mov_b32 v3, s44\nds_write_b32 v125, v3 offset:4\ns_waitcnt lgkmcnt(0)')
    a.label('ST_DEC')
    a.e(f's_barrier\nds_read_b32 v3, v125 offset:4\ns_waitcnt lgkmcnt(0)\nv_readfirstlane_b32 s44, v3\ns_barrier\ns_cmp_eq_u32 s44, 0\ns_cbranch_scc1 STAFFED')
    lane_id(a, 0)
    a.e(f's_mov_b32 s{sMode}, 1\ns_lshl_b32 s{sT0}, s{sWave}, 6\nv_add_u32 v0, s{sT0}, v0\nv_lshlrev_b32 v121, 6, v0\ns_branch TAKE')
    a.label('STAFFED')
    ticket(a, DB_Q3, 45)
    wait_ge(a, sDbg, DB_D1, 224)
    mark(a, 1, o)
    a.label('PH2')
    ticket(a, DB_Q2, 43)
    a.e('s_cmp_ge_u32 s43, 224\ns_cbranch_scc1 PH2_END')
    a.e(f's_lshl_b32 s43, s43, 2\ns_add_u32 s43, s43, s{sWave}')
    a.label('PH2_L')
    a.e('s_mov_b32 s26, s43')
    gen_battn(a, 'sc1', 'sc1')
    a.e('s_add_u32 s43, s43, 896\ns_cmp_lt_u32 s43, 2048\ns_cbranch_scc1 PH2_L')
    a.e('s_waitcnt vmcnt(0)\ns_barrier')
    signal(a, sDbg, DB_D2)
    a.e('s_branch PH2')
    a.label('PH2_END')
    mark(a, 2, o)
    NW3 = o.get('nw3', 32)
    a.e(f's_cmp_lt_u32 s45, 16\ns_cbranch_scc1 ROLE4\ns_cmp_lt_u32 s45, {16+NW3}\ns_cbranch_scc0 ROLE4')
    w3_consts(a, 0)
    add64(a, 46, sWs, imm=WS_FL)
    a.label('W3_L')
    ticket(a, DB_Q3T, 28, per_wave=200)
    a.e('s_cmp_ge_u32 s28, 2048\ns_cbranch_scc1 CH_EXIT\ns_lshr_b32 s27, s28, 5\ns_and_b32 s28, s28, 31')
    def w3wait(a):
        a.e(f's_lshl_b32 s48, s28, 7\ns_add_u32 s48, s48, {FL_PROG}\ns_add_u32 s49, s27, 1')
        wait_ge(a, 46, 0, 0, t=200, wg=False, sleep=o.get('sl3', 2), valreg=49, offreg=48)
    gen_w3(a, 0, 'sc1', 'sc1', w3wait)
    a.e(f's_lshl_b32 s48, s27, 7\ns_add_u32 s48, s48, {FL_CNT}\nv_mov_b32 v200, s48\nv_mov_b32 v201, 1\ns_waitcnt vmcnt(0)\ns_mov_b64 exec, 1\nglobal_atomic_add v200, v201, s[46:47]\ns_mov_b64 exec, -1')
    a.e('s_branch W3_L')
    a.label('ROLE4')
    a.e('s_and_b32 s26, s45, 15')
    w4_load_weights(a); w4_consts(a)
    add64(a, 46, sWs, imm=WS_FL)
    wait_ge(a, sDbg, DB_D2, 224)
    mark(a, 3, o, 20)
    a.e(f's_lshl_b32 s44, s26, 2\ns_add_u32 s44, s44, {DB_Q4}')
    a.label('W4_L')
    ticket(a, 0, 27, offreg=44)
    a.e('s_cmp_ge_u32 s27, 128\ns_cbranch_scc1 W4_END')
    a.e(f's_lshr_b32 s48, s27, 1\ns_lshl_b32 s48, s48, 7\ns_add_u32 s48, s48, {FL_CNT}')
    wait_ge(a, 46, 0, 32, offreg=48, sleep=o.get('sl4', 2))
    gen_w4_tile(a, 'sc1')
    a.e('s_branch W4_L')
    a.label('W4_END')
    mark(a, 4, o, 20)
    a.e('s_branch CH_EXIT')
    o2 = dict(o); o2.pop('time', None)
    if o.get('time'): o2['mark'] = lambda a, k: mark(a, k, o, 84)
    gen_chain_body(a, 'sc1', o2)
    a.label('CH_DONE')
    chain_finish(a)
    mark(a, 7, o, 84)
    if o.get('stamps'):
        a.e(f's_memtime s[94:95]\ns_waitcnt lgkmcnt(0)\ns_sub_u32 s94, s94, s97')
        a.e(f's_lshl_b32 s{sT0}, s{sR}, 7\ns_add_u32 s{sT0}, s{sT0}, 0x1F0000'); add64(a, sMld, sWs, sT0)
        a.e(f'v_mov_b32 v20, {L_MISC}\ns_lshl_b32 s{sT0}, s{sWave}, 6\nv_add_u32 v20, s{sT0}, v20')
        a.e('ds_read_b128 v[28:31], v20 offset:64\nds_read_b128 v[32:35], v20 offset:80\nds_read_b128 v[36:39], v20 offset:96\ns_waitcnt lgkmcnt(0)')
        a.e('v_mov_b32 v20, 0\nv_mov_b32 v24, s94\nv_mov_b32 v25, 0\nv_mov_b32 v26, 1\nv_mov_b32 v27, 0\nv_mov_b32 v40, s100\nv_mov_b32 v41, s101')
        a.e(f'global_store_dwordx4 v20, v[24:27], {sr(sMld,2)}\nglobal_store_dwordx4 v20, v[28:31], {sr(sMld,2)} offset:16\nglobal_store_dwordx4 v20, v[32:35], {sr(sMld,2)} offset:32\nglobal_store_dwordx4 v20, v[36:39], {sr(sMld,2)} offset:48\nglobal_store_dwordx2 v20, v[40:41], {sr(sMld,2)} offset:64')
    if o.get('time'): a.e(f'v_mov_b32 v84, s97\nv_mov_b32 v85, s96\nglobal_store_dword v85, v84, {sr(sWs,2)} offset:32\nv_mov_b32 v84, s100\nglobal_store_dword v85, v84, {sr(sWs,2)} offset:36\nv_mov_b32 v84, s101\nglobal_store_dword v85, v84, {sr(sWs,2)} offset:40')
    a.label('CH_ABORT'); a.label('CH_EXIT')
    a.e('s_endpgm')
    probs = check(a.lines, 'k')
    t = Asm(); emit_table(t, 'CH_TABLE', chain_table())
    txt = HDR + f'; @launch grid=(256,1,1) block=(256,1,1) lds={LDS_TOTAL}\n'
    txt += '.amdgcn_target "amdgcn-amd-amdhsa--gfx950"\n.text\n' + a.text() + t.text()
    txt += '.section .rodata,"a"\n' + kdesc(NAME + '_kernel', 512, 256)
    return txt, probs
if __name__ == '__main__':
    opts = json.loads(sys.argv[2]) if len(sys.argv) > 2 else {}
    txt, probs = build(opts)
    for p in probs: print(p)
    out = sys.argv[1] if len(sys.argv) > 1 else 'cdna_kernels/' + NAME + '.s'
    open(out, 'w').write(txt)
    print('written', out, len(txt))
```

```python
from gen_core import *
import struct, math

import os
RS = int(os.environ.get('RS', '2176'))
WS_P   = 0
WS_M   = 0x100000
WS_KX  = 0x200000
WS_VX  = WS_KX + (16 << 20)
WS_QX  = WS_VX + (16 << 20)
WS_KM  = WS_QX + (16 << 20) + 65536
WS_VM  = WS_KM + (5 << 20)
WS_END1 = WS_VM + (4 << 20)

WS_QS  = 0x180000
WS_FL  = 0x1C0000
FL_KV, FL_PROG, FL_CNT, FL_BYTES = 0, 4096, 8192, 16384
DB_T, DB_NL, DB_R, DB_INIT, DB_Q1, DB_D1, DB_Q2, DB_D2, DB_Q3, DB_Q3T, DB_R2, DB_DW, DB_D1B, DB_Q4 = 0, 4, 8, 12, 16, 20, 24, 28, 32, 36, 40, 44, 48, 64
L_WO = 0
L_MX = 131072
L_XQ = L_MX + 8192
L_OX = L_MX
L_TB = L_XQ + 16 * 272
L_KX = 146432
L_VX = L_KX + 8192
L_MISC = L_VX + 8192
LDS_TOTAL = 163840
assert L_TB + 768 <= L_KX and L_MISC + 64 <= LDS_TOTAL

KA = dict(x=0, mem0=8, Wq=16, Wk=24, Wv=32, Wo=40, seg=48, Bx=56, wqkv=64, wo=72, gate=80, out=88, dbg=96, ws=104)

SPIN_MAX = 400000
PSENT = 0x7F817F81
CSC = (128 ** -0.5) * math.log2(math.e)
def f32bits(x): return struct.unpack('<I', struct.pack('<f', x))[0]

NCH = 20
def chain_table():
    rows = []
    for w in range(4):
        for l in range(64):
            n = l & 15; g = l >> 4
            c = [0] * NCH
            c[0] = l * 16
            c[1] = L_WO + w * 4096 + l * 16
            c[2] = L_WO + 65536 + w * 4096 + l * 16
            c[3] = L_XQ + ((0 if w < 2 else 8) + 2 * g) * 272 + (8 * n + 4 * (w & 1)) * 2
            c[4] = L_XQ + (n & 7) * 272 + g * 16
            c[5] = L_XQ + (8 + 2 * (n >> 2) + (n & 1)) * 272 + g * 16
            c[6] = L_OX + (n & 7) * 272 + (w * 32 + (n >> 3) * 16 + 4 * g) * 2
            c[7] = L_OX + (n >> 1) * 272 + g * 16
            c[8] = (((2 * w + (n >> 3)) * 4 + 2 * ((n >> 2) & 1)) * 4 + g) * RS + (n & 3) * 16
            c[10] = (g >> 1) * 32 + (n & 3) * 8 + (g & 1) * 4
            c[9] = 0xEEEE if (n & 1) else 0x4444
            sel = [0] * 8; idx = 0
            r = n & 3
            for q in range(4):
                i0, i1 = 0, 1
                if r < 2:
                    s = 2 * (n >> 2) + r
                    if q in (s >> 2, 2 + (s >> 2)):
                        if (s & 3) == 3:
                            i0, i1 = 0, 3; sel[2 * q + 1] = 0x3F80
                        else:
                            i0, i1 = (s & 3), 3; sel[2 * q] = 0x3F80
                idx |= (i0 | (i1 << 2)) << (4 * q)
            c[11] = idx
            for q in range(4): c[12 + q] = sel[2 * q] | (sel[2 * q + 1] << 16)
            c[16] = (8 * (g & 1) + 4 * (g >> 1)) * 8192 + n * 16
            c[17] = 32 * g * 1024 + w * 256 + n * 16
            c[18] = (n >> 1) * 1024 + (32 * (g >> 1) + 16 * (n & 1) + 4 * (g & 1)) * 2
            rows.append(c)
    return rows

vL16, vWo, vWo2, vXw, vBq, vAk, vOw, vOr, vPst, vIdx = range(10)
vZ = 10; vVX = 12
vSel = 84; vSelI = 88; vMst = 89
vOA = 40
vAccV = 20; vS0 = 28; vS1 = 32; vSm = 36; vQK = 48; vMA = 64; vKX = 96; vWV = 128
sWq, sWk, sWv, sWo, sMem0, sDbg, sWs = 4, 6, 8, 10, 12, 14, 16
sXcc, sHead, sWave, sR, sStep, sSpin = 20, 21, 22, 23, 24, 25
sPst0, sPst1, sPld, sMld, sMst, sMra = 26, 28, 30, 32, 34, 36
sKX, sVX, sKM, sVM = 38, 40, 42, 44
sHalf, sMex = 46, 48
sC, sT0, sT1, sT2, sT3 = 50, 51, 52, 53, 54
sJ = 56
sSRD = 60
sPra = 64
sSent = 66
sMode = 67
sTim = 70

WO_ORDER = [(j0 + j, kq) for j0 in (0, 2) for kq in range(4) for j in range(2)]
def wo_off(j, kq, hf):
    f = 4 * (j & 1) + kq
    return (f >> 1) * 16384 + (f & 1) * 2048 + hf * 1024
def smf(a, d, A, B, idx=vIdx):
    a.e(f'v_smfmac_f32_16x16x64_bf16 {vr(d,4)}, {vr(A,4)}, {B}, {vr(idx)}')
def wvB(u, t): return vr(vWV + (u * 2 + t) * 8, 8)

SST = [0]
def sst(a):
    if SST[0]:
        a.e(f's_memtime s[{72+2*(SST[0]-1)}:{73+2*(SST[0]-1)}]'); SST[0] += 1
def gen_weight_load(a, hooks):
    LO8, LO1 = 16, 17
    SEL0, SEL1 = 18, 19
    TMP = [20, 24, 28]
    LANDOF = [32, 64, 96, 128, 160, 192, 224, 32, 64, 128, 160, 192, 96, 32, 64, 96]
    a.e(f'v_mov_b32 v{SEL0}, 0x05040100\nv_mov_b32 v{SEL1}, 0x07060302')
    units = [(mat, kbl, half) for mat in range(4) for kbl in range(2) for half in range(2)]
    def issue(ui):
        mat, kbl, half = units[ui]
        land = LANDOF[ui]
        if kbl == 0 and half == 0:
            base = [sWq, sWk, sWv, sWo][mat]
            a.e(f's_mov_b32 s{sSRD}, s{base}\ns_and_b32 s{sSRD+1}, s{base+1}, 0xffff\ns_mov_b32 s{sSRD+2}, {4<<20}\ns_mov_b32 s{sSRD+3}, 0x20000')
            if mat < 3: a.e(f's_lshl_b32 s{sT0}, s{sWave}, 20\ns_lshl_b32 s{sT1}, s{sHead}, 8\ns_add_u32 s{sPra}, s{sT0}, s{sT1}')
            else: a.e(f's_lshl_b32 s{sPra}, s{sHead}, 17')
        for Dl in range(4):
            for jj in range(2):
                if mat < 3: off = (kbl * 64 + 32 * half) * 8192 + (Dl & 1) * 16 * 8192 + (2 * ((Dl >> 1) & 1) + jj) * 8192
                else: off = (2 * (Dl & 1) + jj) * 8192 + (2 * (2 * kbl + half) + (Dl >> 1)) * 1024
                a.e(f's_add_u32 s{sT1}, s{sPra}, {off}')
                r = land + (2 * Dl + jj) * 4
                a.e(f'buffer_load_dwordx4 {vr(r,4)}, v{LO8 if mat<3 else LO1}, {sr(sSRD,4)}, s{sT1} offen')
    cnt = [0]
    def process(ui):
        mat, kbl, half = units[ui]
        land = LANDOF[ui]
        for t in range(8):
            tq = TMP[cnt[0] % 3]; cnt[0] += 1
            if mat < 3:
                c, o = t >> 1, t & 1
                for Dl in range(4):
                    a.e(f'v_perm_b32 v{tq+Dl}, v{land+(2*Dl+1)*4+c}, v{land+(2*Dl)*4+c}, v{SEL1 if o else SEL0}')
                a.e(f'ds_write_b128 v{vWo if t<4 else vWo2}, {vr(tq,4)} offset:{(t&3)*16384+kbl*2048+half*1024}')
            else:
                j, hi = t >> 1, t & 1
                for x in range(2):
                    for p in range(2):
                        Dl = 2 * hi + x
                        a.e(f'v_perm_b32 v{tq+2*x+p}, v{land+(2*Dl+1)*4+j}, v{land+(2*Dl)*4+j}, v{SEL1 if p else SEL0}')
                if j < 2: a.e(f'ds_write_b128 v{vWo}, {vr(tq,4)} offset:{wo_off(j, 2*kbl+half, hi)}')
                else:
                    i = WO_ORDER.index((j, 2 * kbl + half)) - 8
                    for q in range(4): a.e(f'v_accvgpr_write_b32 a{192+i*8+hi*4+q}, v{tq+q}')
    def readback(mat):
        a.e('s_waitcnt lgkmcnt(0)')
        if mat < 2: a.e(f's_and_b32 s{sT2}, s{sWave}, 1\ns_lshl_b32 s{sT2}, s{sT2}, 16')
        else: a.e(f's_lshl_b32 s{sT2}, s{sWave}, 15')
        for j in range(4):
            a.e(f's_lshl_b32 s{sT1}, s{sJ+j}, 1\ns_add_u32 s{sT1}, s{sT1}, s{sT2}\nv_add_u32 v{20+j}, s{sT1}, v{vL16}')
        a.e('s_barrier')
        if mat < 2:
            lab = a.newlabel('rbskip')
            a.e(f's_lshr_b32 s{sT0}, s{sWave}, 1\ns_cmp_eq_u32 s{sT0}, {mat}\ns_cbranch_scc0 {lab}')
            for u in range(8):
                for t in range(4):
                    for half in range(2):
                        dst = (u*3+t)*8+half*4 if t < 3 else 192+u*8+half*4
                        a.e(f'ds_read_b128 {ar(dst,4)}, v{20+(u>>1)} offset:{t*16384+(u&1)*2048+half*1024}')
                a.e('s_waitcnt lgkmcnt(4)')
            a.label(lab)
        else:
            for u in range(8):
                for t in range(2):
                    for half in range(2):
                        a.e(f'ds_read_b128 {vr(vWV+(u*2+t)*8+half*4,4)}, v{20+(u>>1)} offset:{t*16384+(u&1)*2048+half*1024}')
                a.e('s_waitcnt lgkmcnt(4)')
        a.e('s_waitcnt lgkmcnt(0)\ns_barrier')
    DEPTH = 5
    issued = 0; extra = {}
    order = []
    def can_issue(k, done):
        prev = [j for j in range(k) if LANDOF[j] == LANDOF[k]]
        return (not prev or prev[-1] < done) and k - done < DEPTH + 1
    def note(n): order.extend([None] * n)
    for ui in range(16):
        while issued < 16 and can_issue(issued, ui):
            issue(issued); order.extend([issued] * 8); issued += 1
        if ui == 0 and 'first' in hooks: note(hooks['first'](a))
        last = max(i for i, x in enumerate(order) if x == ui)
        a.e(f's_waitcnt vmcnt({len(order)-1-last})')
        if ui in (0, 3, 7, 11, 13, 15): sst(a)
        process(ui)
        if ui in hooks: note(hooks[ui](a))
        if ui % 4 == 3 and ui < 12:
            while issued < 16 and can_issue(issued, ui + 1):
                issue(issued); order.extend([issued] * 8); issued += 1
            readback(ui // 4)
            sst(a)
            if ui == 11:
                for u in range(8):
                    for hf in range(2):
                        a.e(f'ds_write_b128 v{vWo2}, {ar(192+u*8+hf*4,4)} offset:{(u>>1)*16384+(u&1)*2048+hf*1024}')
                    if u % 4 == 3: a.e('s_waitcnt lgkmcnt(0)')
            if ('rb', ui // 4) in hooks: note(hooks[('rb', ui // 4)](a))

def add64(a, d, s, off_sreg=None, imm=None):
    if off_sreg is not None:
        a.e(f's_add_u32 s{d}, s{s}, s{off_sreg}\ns_addc_u32 s{d+1}, s{s+1}, 0')
    else:
        a.e(f's_add_u32 s{d}, s{s}, {imm}\ns_addc_u32 s{d+1}, s{s+1}, 0')

def step_bases(a, part=None):
    if part in (None, 0): a.e(f's_and_b32 s{sT0}, s{sStep}, 3\ns_lshl_b32 s{sT0}, s{sT0}, 13\ns_add_u32 s{sT0}, s{sT0}, s{sJ}')
    if part in (None, 1):
        a.e(f's_add_u32 s{sT0}, s{sT0}, {WS_M}'); add64(a, sMld, sWs, sT0)

def step_bases2(a, part):
    if part == 0:
        a.e(f's_lshl_b32 s{sT2}, s{sR}, 6\ns_add_u32 s{sT2}, s{sT2}, {WS_M}')
        a.e(f's_add_u32 s{sT0}, s{sStep}, 1\ns_and_b32 s{sT0}, s{sT0}, 3\ns_lshl_b32 s{sT0}, s{sT0}, 13\ns_add_u32 s{sT0}, s{sT0}, s{sT2}')
        add64(a, sMst, sWs, sT0)
        a.e(f's_add_u32 s{sT0}, s{sStep}, 3\ns_and_b32 s{sT0}, s{sT0}, 3\ns_lshl_b32 s{sT0}, s{sT0}, 13\ns_add_u32 s{sT0}, s{sT0}, s{sT2}')
        add64(a, sMra, sWs, sT0)
        return
    a.e(f's_and_b32 s{sT0}, s{sStep}, 1\ns_mul_i32 s{sT0}, s{sT0}, {128*RS}')
    a.e(f's_lshl_b32 s{sT1}, s{sHead}, 6\ns_add_u32 s{sT1}, s{sT1}, s{sT0}')
    add64(a, sPst0, sWs, sT1)
    add64(a, sPst1, sPst0, imm=4 * RS)
    a.e(f's_mul_i32 s{sT1}, s{sR}, {RS}\ns_add_u32 s{sT2}, s{sT1}, s{sT0}')
    add64(a, sPld, sWs, sT2)
    a.e(f's_lshr_b32 s{sSent}, s{sStep}, 1\ns_and_b32 s{sSent}, s{sSent}, 1\ns_xor_b32 s{sSent}, s{sSent}, 1')

class Cnt:
    def __init__(self, a, name, mx):
        self.a = a; self.name = name; self.mx = mx; self.q = []
    def issue(self, text, tag=None):
        self.a.e(text); self.q.append(tag)
    def wait(self, tag):
        idx = max(i for i, t in enumerate(self.q) if t == tag)
        n = len(self.q) - 1 - idx
        self.a.e(f's_waitcnt {self.name}({min(n, self.mx)})')
        if n <= self.mx: self.q = self.q[idx + 1:]
    def wait_all(self):
        self.a.e(f's_waitcnt {self.name}(0)'); self.q = []

aWO = 192
def qkB(u, t): return ar((u * 3 + t) * 8, 8)
vSA, vSB = 28, 40
sKMex = 98
sKVok, sFlKV, sFlP, sPubEx, sFlEx = 55, 18, 0, 2, 64
vMXa = 92
sJM = 68

def kv_poll(a, lab, need, t=84):
    a.e(f's_mov_b32 s{sSpin}, 0')
    a.label(lab)
    a.e(f'global_load_dwordx4 {vr(t,4)}, v{vZ}, {sr(sFlKV,2)} sc1')
    a.e(f's_add_u32 s{sSpin}, s{sSpin}, 1\ns_cmp_gt_u32 s{sSpin}, {SPIN_MAX}\ns_cbranch_scc1 CH_ABORT')
    a.e(f's_waitcnt vmcnt(0)\nv_min_u32 v{t}, v{t}, v{t+2}\nv_min_u32 v{t+1}, v{t+1}, v{t+3}\nv_lshlrev_b32 v{t}, 1, v{t}\nv_lshl_add_u32 v{t+1}, v{t+1}, 1, 1\nv_min_u32 v{t}, v{t}, v{t+1}\ns_nop 0\nv_readfirstlane_b32 s{sKVok}, v{t}\ns_nop 1')
    a.e(f's_cmp_ge_u32 s{sKVok}, 64\ns_cselect_b32 s{sKVok}, 100, s{sKVok}\ns_cmp_lt_u32 s{sKVok}, s{need}\ns_cbranch_scc1 {lab}')

def gen_loop(a, st, tag, pubst='', opts=None):
    o = dict(ack1=1, stamps=0); o.update(opts or {})
    L = lambda x: f'{x}_{tag}'
    MG = o.get('merged', 0)
    LD = 'sc1' if MG else ''
    PTS = o.get('pts', [0, 1, 2, 3, 4, 5, 6, 7, 8, 9, 10, 11])
    NST = len(PTS)
    def stamp(k):
        if o['stamps'] and k in PTS:
            i = PTS.index(k); a.e(f's_memtime s[{72+2*i}:{73+2*i}]')
    def stamp_collect():
        if o['stamps']:
            a.e('s_waitcnt lgkmcnt(0)')
            for k in range(NST):
                prev = 96 if k == 0 else 72 + 2 * (k - 1)
                a.e(f's_sub_u32 s{73+2*k}, s{72+2*k}, s{prev}')
            a.e(f's_mov_b32 s96, s{72+2*(NST-1)}')
            a.e(f'v_mov_b32 v{vMA+28}, {L_MISC}\ns_lshl_b32 s{sT0}, s{sWave}, 6\nv_add_u32 v{vMA+28}, s{sT0}, v{vMA+28}')
            a.e(f's_cmp_gt_u32 s{sStep}, {o.get("st0",0)}\ns_cselect_b64 exec, 1, 0\ns_cmp_le_u32 s{sStep}, {o.get("st1",99)}\ns_cselect_b64 exec, exec, 0')
            for k in range(NST):
                a.e(f'v_mov_b32 v{vMA+29}, s{73+2*k}\nds_add_u32 v{vMA+28}, v{vMA+29} offset:{64+4*k}')
            a.e('s_mov_b64 exec, -1\ns_waitcnt lgkmcnt(0)')
    zero16 = lambda d: a.e(f'v_mfma_f32_32x32x8_bf16 {vr(d,16)}, {vr(vZ,2)}, {vr(vZ,2)}, 0')
    lg = Cnt(a, 'lgkmcnt', 15); vm = Cnt(a, 'vmcnt', 63)
    def p2loads():
        for i in range(2): vm.issue(f'global_load_dwordx4 {vr(vMA+4*i,4)}, v{vL16}, {sr(sMld,2)} offset:{1024*i} sc1', 'p2')
    def t3r(u, hf):
        sl = vSA if u % 2 == 0 else vSB
        lg.issue(f'ds_read_b128 {vr(sl+4*hf,4)}, v{vWo2} offset:{(u>>1)*16384+(u&1)*2048+hf*1024}', ('t3', u))
    def t3read(u): t3r(u, 0); t3r(u, 1)
    vKMp = vMA + 26
    a.label(L('ENTRY'))
    a.label(L('STEP'))
    D2 = o.get('d2', 2); pos = o.get('p2pos', [3, 5]); gap = o.get('gap', 0)
    if o.get('jit'):
        lab = a.newlabel('jit')
        a.e(f's_and_b32 s{sT0}, s{sStep}, 31\ns_cmp_lg_u32 s{sT0}, s{sHead}\ns_cbranch_scc1 {lab}\ns_sleep {o["jit"]}')
        a.label(lab)
    if MG:
        a.e(f's_add_u32 s{sT0}, s{sStep}, 2\ns_cmp_lt_u32 s{sKVok}, s{sT0}\ns_cbranch_scc1 {L("KVP")}')
        a.label(L('KVOK'))
    def c0():
        if o.get('time'):
            lab = a.newlabel('tm'); a.e(f's_cmp_lg_u32 s{sStep}, 3\ns_cbranch_scc1 {lab}\ns_memtime s[72:73]\ns_waitcnt lgkmcnt(0)\ns_mov_b32 s96, s72\ns_mov_b32 s100, 0\ns_mov_b32 s101, 0'); a.label(lab)
        a.e(f's_mov_b32 s{sSpin}, 0'); t3read(0); t3read(1); zero16(vQK)
        a.e(f'v_lshrrev_b32 v{vSm}, 1, v{vL16}')
        if MG: a.e(f's_sub_u32 s{sT0}, s{sStep}, 1\ns_max_i32 s{sT0}, s{sT0}, 0\nv_mov_b32 v{vSm+1}, s{sT0}')
    def c1():
        for j in range(8): a.e(f'v_mov_b32 v{vAccV+j}, 0')
        for j in range(4): a.e(f'v_add_u32 v{vMXa+j}, s{sJM+j}, v{vL16}')
    def c4():
        a.e(f's_add_u32 s{sT0}, s{sJ}, {L_KX}\ns_mov_b32 m0, s{sT0}')
        add64(a, sKX, sKX, imm=32 * 8192); add64(a, sVX, sVX, imm=32 * 8192)
    chunks = [c0, c1, lambda: step_bases2(a, 0), lambda: step_bases2(a, 1), c4] + [lambda: a.e('s_nop 15')] * gap
    for i, ch in enumerate(chunks + [lambda: None]):
        for p in pos:
            if p == i: p2loads()
        ch()
    assert len(pos) == D2
    stamp('w0')
    a.e(f's_waitcnt vmcnt({2*(D2-1)})')
    stamp('w1')
    t0, t1 = vMA + 16, vMA + 17
    def p2check(lab):
        a.e(f'v_max3_u32 v{t0}, v{vMA}, v{vMA+1}, v{vMA+2}\nv_max3_u32 v{t1}, v{vMA+3}, v{vMA+4}, v{vMA+5}\nv_max3_u32 v{t0}, v{t0}, v{vMA+6}, v{vMA+7}')
        a.e(f'v_max_u32 v{t0}, v{t0}, v{t1}\nv_cmp_eq_u32 vcc, -1, v{t0}\ns_cbranch_vccnz {lab}')
    p2check(L("P2R"))
    a.label(L('P2OK'))
    lg.issue(f'ds_write_b128 v{vMXa}, {vr(vMA,4)}', 'mxw'); lg.issue(f'ds_write_b128 v{vMXa}, {vr(vMA+4,4)} offset:1024', 'mxw')
    stamp(3)
    def qk(u, t):
        if t < 3: smf(a, vQK + 4 * t, vMA + 4 * u, qkB(u, t))
        else:
            if ('t3', u) in lg.q: lg.wait(('t3', u))
            smf(a, vQK + 12, vMA + 4 * u, vr(vSA if u % 2 == 0 else vSB, 8))
    vq = [(u, t) for u in range(8) for t in range(2)]
    def vs(n=1):
        for _ in range(n):
            u, t = vq.pop(0); smf(a, vAccV + 4 * t, vMA + 4 * u, wvB(u, t))
    NPRE = o.get('npre', 0)
    qk(0, 0)
    vm.issue(f'global_store_dwordx2 v{vSm}, {vr(vKMp,2)}, {sr(sKM,2)} {pubst}')
    qk(0, 1); qk(0, 2); qk(0, 3)
    for t in range(NPRE): qk(1, t)
    lg.wait_all(); a.e('s_barrier')
    stamp(4)
    def mx(u): lg.issue(f'ds_read_b128 {vr(vMA+4*u,4)}, v{vMXa+(u>>1)} offset:{(u&1)*1024}', ('mx', u))
    kv = lambda b, off: vm.issue(f'global_load_lds_dwordx4 v{vL16}, {sr(b,2)} offset:{off} {LD}', 'dma')
    X = vSm
    add1 = lambda b: a.e(f'v_add_f32 v{b}, v{b}, v{b+1}')
    add2 = lambda b: (add1(b), add1(b + 2))
    def flag():
        if MG: a.e('s_mov_b64 exec, 1'); vm.issue(f'global_store_dword v{vZ}, v{vSm+1}, {sr(sFlP,2)} sc1'); a.e('s_mov_b64 exec, -1')
    seq = [('q', 1, t) for t in range(NPRE, 4)] + [('v',)] * NPRE
    for u in range(2, 6):
        seq += [('q', u, 0), ('q', u, 1), ('q', u, 2)] + ([('q', u - 1, 3)] if u >= 3 else [])
    seq += [('q', 6, 0), ('q', 7, 0), ('q', 6, 1), ('q', 5, 3), ('q', 7, 1), ('q', 6, 2), ('q', 7, 2), ('q', 6, 3), ('q', 7, 3)]
    after = {
        0: [lambda: mx(3)], 1: [lambda: mx(4)], 2: [lambda: t3r(2, 0)], 3: [lambda: t3r(2, 1)],
        ('q', 2, 0): [lambda: mx(5)], ('q', 2, 1): [lambda: t3r(3, 0), lambda: kv(sKX, 0)], ('q', 2, 2): [lambda: t3r(3, 1)],
        ('q', 3, 0): [lambda: mx(6)], ('q', 3, 1): [lambda: mx(7)], ('q', 3, 2): [lambda: kv(sKX, 1024), lambda: a.e(f's_add_u32 s{sT0}, m0, 8192\ns_mov_b32 m0, s{sT0}')],
        ('q', 2, 3): [lambda: t3r(4, 0)], ('q', 4, 0): [lambda: t3r(4, 1)], ('q', 4, 2): [lambda: kv(sVX, 0)],
        ('q', 3, 3): [lambda: t3r(5, 0)], ('q', 5, 0): [lambda: t3r(5, 1)], ('q', 5, 2): [lambda: kv(sVX, 1024)],
        ('q', 4, 3): [lambda: t3r(6, 0)], ('q', 6, 0): [lambda: t3r(6, 1)],
        ('q', 7, 0): [lambda: vm.issue(f'global_store_dwordx2 v{vSm}, {vr(vSm+2,2)}, {sr(sVM,2)} {pubst}')], ('q', 6, 1): [flag],
        ('q', 5, 3): [lambda: t3r(7, 0), lambda: add1(vQK)], ('q', 7, 1): [lambda: t3r(7, 1), lambda: add1(vQK + 2)],
        ('q', 7, 2): [lambda: a.e('s_nop 0'), lambda: add1(vQK + 4)], ('q', 6, 3): [lambda: add1(vQK + 6)],
        ('q', 7, 3): [lambda: a.e(f'v_cvt_pk_bf16_f32 v{X}, v{vQK}, v{vQK+4}')],
    }
    if NPRE < 4: assert seq[4 - NPRE - 1] == ('q', 1, 3)
    mx(2)
    for i, op in enumerate(seq):
        if op[0] == 'v': vs(1)
        else:
            if ('mx', op[1]) in lg.q: lg.wait(('mx', op[1]))
            qk(op[1], op[2])
        for f in after.get(i, []) + after.get(op, []): f()
    stamp(5)
    vs(1); add1(vQK + 8)
    vs(1); add1(vQK + 10)
    a.e(f'v_cvt_pk_bf16_f32 v{X+2}, v{vQK+2}, v{vQK+6}')
    a.e(f'v_add_f32 v{vQK+12}, v{vQK+12}, v{vQK+13}\nv_cvt_pk_bf16_f32 v{X+1}, v{vQK+8}, v{vQK+12}')
    lg.issue(f'ds_write_b64 v{vXw}, {vr(X,2)}', 'xw')
    a.e(f'v_add_f32 v{vQK+14}, v{vQK+14}, v{vQK+15}\nv_cvt_pk_bf16_f32 v{X+3}, v{vQK+10}, v{vQK+14}')
    lg.issue(f'ds_write_b64 v{vXw}, {vr(X+2,2)} offset:272', 'xw')
    stamp('c0')
    vs(o.get('cv', 4))
    if D2 > 1: vm.wait('p2')
    lg.wait_all(); a.e('s_barrier')
    stamp(6)
    bq = lambda ks: lg.issue(f'ds_read_b128 {vr(vQK+4*ks,4)}, v{vBq} offset:{64*ks}', ('bq', ks))
    ak = lambda ks: lg.issue(f'ds_read_b128 {vr(vMA+4*ks,4)}, v{vAk} offset:{64*ks}', ('ak', ks))
    bq(0)
    for k in range(1, 4):
        if k <= o.get('rv', 3): vs(1)
        bq(k)
    assert len(vq) <= 8
    stamp(7)
    E = vQK + 0
    order = WO_ORDER
    slots = [vKX, vKX + 8, vKX + 16, vKX + 24, vMA, vMA + 8, vMA + 16, vMA + 24]
    wq = [(i, hf) for i in (0, 2, 1, 3, 4, 5, 6, 7) for hf in range(2)]
    def wr(n=1):
        for _ in range(n):
            if not wq: a.e('s_nop 0'); continue
            i, hf = wq.pop(0); j, kq = order[i]
            lg.issue(f'ds_read_b128 {vr(slots[i]+4*hf,4)}, v{vWo} offset:{wo_off(j, kq, hf)}', 'wo')
    for ks in range(4):
        lg.wait(('bq', ks))
        for tl in range(2):
            d = vS0 + 4 * tl
            a.e(f'v_mfma_f32_16x16x32_bf16 {vr(d,4)}, {vr(vKX+16*tl+4*ks,4)}, {vr(vQK+4*ks,4)}, {"0" if ks==0 else vr(d,4)}')
            if ks < 2: ak(2 * ks + tl)
            elif o.get('wd', 0): wr(1)
    a.e(f's_mov_b64 vcc, {sr(sHalf,2)}')
    for ks in range(4):
        lg.wait(('ak', ks))
        a.e(f'v_mfma_f32_16x16x32_bf16 {vr(vSm,4)}, {vr(vMA+4*ks,4)}, {vr(vQK+4*ks,4)}, {"0" if ks==0 else vr(vSm,4)}')
        wr(1)
        if ks >= 2:
            for r in range(2 * ks - 4, 2 * ks - 2): a.e(f'v_cndmask_b32 v{vS0+r}, v{vS0+r}, v{vS1+r}, vcc')
    stamp(8)
    P = vS0; M_, T_ = vS1 + 1, vS1 + 2
    vn = lambda: vs(1) if vq else a.e('s_nop 0')
    vn()
    a.e(f'v_max3_f32 v{M_}, v{P}, v{P+1}, v{P+2}'); wr(1)
    vn()
    a.e('s_nop 0')
    a.e(f'v_cndmask_b32 v{P+4}, v{vSm}, v{vSm+1}, vcc')
    a.e(f'v_max3_f32 v{M_}, v{M_}, v{P+3}, v{P+4}')
    vn(); wr(1)
    a.e(f'v_max_f32_dpp v{M_}, v{M_}, v{M_} row_ror:8 row_mask:0xf bank_mask:0xf')
    a.e(f'v_mov_b32 v{T_}, v{M_}')
    vn(); wr(1)
    a.e(f'v_permlane16_swap_b32 v{M_}, v{T_}')
    a.e(f'v_max_f32 v{M_}, v{M_}, v{T_}')
    a.e(f'v_mov_b32 v{T_}, v{M_}')
    vn(); vs(len(vq)); wr(1)
    a.e(f'v_permlane32_swap_b32 v{M_}, v{T_}')
    a.e(f'v_max_f32 v{M_}, v{M_}, v{T_}')
    stamp('e0')
    a.e(f'v_mul_f32 v{M_}, s{sC}, v{M_}')
    for r in range(5): a.e(f'v_fma_f32 v{P+r}, v{P+r}, s{sC}, -v{M_}')
    for r in range(5): a.e(f'v_exp_f32 v{P+r}, v{P+r}')
    assert not vq
    stamp('e1')
    a.e(f'v_cvt_pk_bf16_f32 v{E+4}, v{P}, v{P+1}\nv_cvt_pk_bf16_f32 v{E+5}, v{P+2}, v{P+3}\nv_cvt_pk_bf16_f32 v{T_}, v{P+4}, v{P+4}')
    dp = 'row_ror:8 row_mask:0xf bank_mask:0xf'
    a.e(f'v_cndmask_b32_dpp v{E+2}, v{E+4}, v{E+4}, vcc {dp}\nv_cndmask_b32_dpp v{E+3}, v{E+5}, v{E+5}, vcc {dp}\nv_cndmask_b32_dpp v{E+7}, v{T_}, v{T_}, vcc {dp}')
    a.e('s_not_b64 vcc, vcc')
    a.e(f'v_cndmask_b32_dpp v{E}, v{E+4}, v{E+4}, vcc {dp}\nv_cndmask_b32_dpp v{E+1}, v{E+5}, v{E+5}, vcc {dp}\nv_cndmask_b32_dpp v{E+6}, v{T_}, v{T_}, vcc {dp}')
    a.e(f'v_cvt_pk_bf16_f32 v{E+8}, v{vAccV}, v{vAccV+1}')
    stamp(9)
    T0, T1 = E + 12, vSm
    a.e(f'v_mfma_f32_16x16x32_bf16 {vr(T0,4)}, {vr(vVX,4)}, {vr(E,4)}, 0')
    a.e(f'v_cvt_pk_bf16_f32 v{E+9}, v{vAccV+2}, v{vAccV+3}\nv_cvt_pk_bf16_f32 v{E+10}, v{vAccV+4}, v{vAccV+5}')
    a.e(f'v_mfma_f32_16x16x32_bf16 {vr(T1,4)}, {vr(vVX+4,4)}, {vr(E,4)}, 0')
    a.e(f'v_cvt_pk_bf16_f32 v{E+11}, v{vAccV+6}, v{vAccV+7}\nv_add_f32 v{M_}, v{P}, v{P+1}')
    a.e(f'v_mfma_f32_16x16x16_bf16 {vr(T0,4)}, {vr(E+8,2)}, {vr(E+6,2)}, {vr(T0,4)}')
    a.e(f'v_add_f32 v{T_}, v{P+2}, v{P+3}\nv_add_f32 v{M_}, v{M_}, v{P+4}')
    a.e(f'v_mfma_f32_16x16x16_bf16 {vr(T1,4)}, {vr(E+10,2)}, {vr(E+6,2)}, {vr(T1,4)}')
    a.e(f'v_add_f32 v{M_}, v{M_}, v{T_}')
    stamp('f0')
    wr(2)
    a.e(f'v_add_f32_dpp v{M_}, v{M_}, v{M_} {dp}')
    a.e(f'v_mov_b32 v{T_}, v{M_}')
    wr(2)
    a.e(f'v_permlane16_swap_b32 v{M_}, v{T_}')
    a.e(f'v_add_f32 v{M_}, v{M_}, v{T_}')
    a.e(f'v_mov_b32 v{T_}, v{M_}')
    for r in range(2): a.e(f'v_cndmask_b32 v{P+r}, v{T1+r}, v{T0+r}, vcc')
    a.e(f'v_permlane32_swap_b32 v{M_}, v{T_}')
    a.e(f'v_add_f32 v{M_}, v{M_}, v{T_}')
    a.e(f'v_rcp_f32 v{M_}, v{M_}')
    for r in range(2, 4): a.e(f'v_cndmask_b32 v{P+r}, v{T1+r}, v{T0+r}, vcc')
    for r in range(4): a.e(f'v_mul_f32 v{P+r}, v{P+r}, v{M_}')
    a.e(f'v_cvt_pk_bf16_f32 v{vSm}, v{P}, v{P+1}\nv_cvt_pk_bf16_f32 v{vSm+1}, v{P+2}, v{P+3}')
    stamp('f1')
    lg.issue(f'ds_write_b64 v{vOw}, {vr(vSm,2)}', 'ow')
    G0 = vQK; OA = [vOA, vOA + 4, vS0, vS1]
    zero16(G0)
    wr(len(wq))
    stamp('g0')
    lg.wait('ow')
    stamp('g1')
    a.e('s_barrier')
    stamp(10)
    for kq in range(4): lg.issue(f'ds_read_b128 {vr(OA[kq],4)}, v{vOr} offset:{64*kq}', ('o', kq))
    add2(vAccV); add2(vAccV + 4)
    a.e(f'v_cvt_pk_bf16_f32 v{vSm+2}, v{vAccV}, v{vAccV+2}\nv_cvt_pk_bf16_f32 v{vSm+3}, v{vAccV+4}, v{vAccV+6}')
    a.e(f's_cmp_ge_u32 s{sStep}, 63\ns_cbranch_scc1 CH_DONE')
    K0, K1 = vAccV, vAccV + 4
    cv = lambda d, b: a.e(f'v_cvt_pk_bf16_f32 v{d}, v{b}, v{b+1}')
    tagop = lambda G: a.e(f'v_and_or_b32 v{G}, v{G}, -2, s{sSent}')
    def sal0():
        add64(a, sKM, sKM, imm=32 * 2048); a.e(f's_add_u32 s{sStep}, s{sStep}, 1')
    def sal1(): add64(a, sVM, sVM, imm=32 * 2048)
    side = {0: sal0, 1: sal1, 2: lambda: step_bases(a, 0), 3: lambda: step_bases(a, 1),
            4: lambda: a.e(f'v_lshrrev_b32 v{vMA+1}, 9, v{vL16}') if False else None,
            9: lambda: cv(K0, G0), 10: lambda: cv(K0 + 2, G0 + 2), 11: lambda: (cv(K0 + 1, G0 + 4), cv(K0 + 3, G0 + 6)), 12: lambda: tagop(K0),
            13: lambda: a.e(f'global_store_dwordx4 v{vPst}, {vr(K0,4)}, {sr(sPst0,2)} {st}')}
    for i in range(16):
        j, kq = order[i]
        if ('o', kq) in lg.q: lg.wait(('o', kq))
        if i == 0: stamp('h0')
        smf(a, G0 + 4 * j, OA[kq], vr(slots[i], 8) if i < 8 else ar(aWO + (i - 8) * 8, 8))
        if i in side: side[i]()
        stamp(f'h{i+1}')
    a.e(f'v_lshrrev_b32 v{vMA+1}, 9, v{vL16}\nv_and_b32 v{vMA+2}, 0xf0, v{vL16}\nv_lshrrev_b32 v{vMA+3}, 2, v{vL16}\ns_nop 3')
    cv(K1, G0 + 8); cv(K1 + 2, G0 + 10); tagop(K1); cv(K1 + 1, G0 + 12); cv(K1 + 3, G0 + 14)
    a.e(f'global_store_dwordx4 v{vPst}, {vr(K1,4)}, {sr(sPst1,2)} {st}')
    stamp(11)
    stamp_collect()
    hop_consts(a)
    a.e(f's_mov_b32 s{sSpin}, 0')
    PA, PB = vMA + 4, vMA + 12; RA = vS0
    for i in range(4): a.e(f'v_mov_b32 v{RA+i}, 0')
    a.e(f'v_mov_b32 v{RA+5}, -1')
    D1 = o.get('d1', 1)
    def p1loads(PL):
        a.e(f'global_load_dwordx4 {vr(PL,4)}, v{vL16}, {sr(sPld,2)} sc1\nglobal_load_dwordx4 {vr(PL+4,4)}, v{vL16}, {sr(sPld,2)} offset:1024 sc1')
    def tagchk(PL, lab):
        a.e(f'v_and_b32 v{RA+4}, 1, v{RA+4}\nv_cmp_ne_u32 vcc, 0, v{RA+4}\ns_cbranch_vccnz {lab}')
    tb = lambda PL: a.e(f'v_bitop3_b32 v{RA+4}, v{PL}, v{PL+4}, s{sSent} bitop3:0x7e')
    red = lambda PL: a.e(f'v_smfmac_f32_16x16x64_bf16 {vr(RA,4)}, {vr(vSel,4)}, {vr(PL,8)}, v{vSelI}')
    E1 = o.get('e1', -1)
    if E1 >= 0:
        for _ in range(E1): a.e('s_nop 7')
        p1loads(PA)
        a.e('s_waitcnt vmcnt(2)')
        stamp(0)
        if D1 > 1: p1loads(PB)
    else:
        a.e('s_waitcnt vmcnt(0)')
        stamp(0)
        p1loads(PA)
    a.e('s_barrier')
    kv_reads(a)
    if D1 > 1 and E1 < 0: p1loads(PB)
    a.e(f's_waitcnt vmcnt({2*(D1-1)}) lgkmcnt(10)')
    stamp('p0')
    tb(PA); red(PA); tagchk(PA, L('P1R'))
    a.label(L('P1OK'))
    a.e('s_nop 4')
    a.e(f'v_add_f32_dpp v{RA}, v{RA}, v{RA} row_ror:4 row_mask:0xf bank_mask:0xf\nv_add_f32_dpp v{RA+1}, v{RA+1}, v{RA+1} row_ror:4 row_mask:0xf bank_mask:0xf\ns_nop 0')
    a.e(f'v_add_f32_dpp v{RA}, v{RA}, v{RA} row_ror:8 row_mask:0xf bank_mask:0xf\nv_add_f32_dpp v{RA+1}, v{RA+1}, v{RA+1} row_ror:8 row_mask:0xf bank_mask:0xf')
    a.e(f's_mov_b64 exec, {sr(sMex,2)}')
    a.e(f'v_cvt_pk_bf16_f32 v{RA}, v{RA}, v{RA+1}')
    stamp(1)
    a.e(f'v_min_u32 v{RA}, -2, v{RA}')
    a.e(f'global_store_dword v{vMst}, v{RA}, {sr(sMst,2)} {st}\nglobal_store_dword v{vMst}, v{RA+5}, {sr(sMra,2)} {st}\ns_mov_b64 exec, -1')
    stamp(2)
    a.e(f's_branch {L("STEP")}')
    spin = lambda c: a.e(f's_add_u32 s{sSpin}, s{sSpin}, 1\ns_add_u32 s{c}, s{c}, 1\ns_cmp_gt_u32 s{sSpin}, {SPIN_MAX}\ns_cbranch_scc1 CH_ABORT')
    a.label(L('P2R'))
    a.e('s_mov_b64 exec, vcc')
    p2loads()
    a.e('s_mov_b64 exec, -1')
    spin(100)
    a.e(f's_waitcnt vmcnt({2*(D2-1)})')
    p2check(L("P2R"))
    a.e(f's_branch {L("P2OK")}')
    if MG:
        a.label(L('KVP'))
        if 'mark' in o: a.e(f's_lshl_b32 s97, s97, 6\ns_add_u32 s97, s97, s{sStep}')
        kv_poll(a, L('KVP2'), sT0)
        a.e(f's_branch {L("KVOK")}')
    zra = lambda: [a.e(f'v_mov_b32 v{RA+i}, 0') for i in range(4)]
    a.label(L('P1R'))
    if D1 == 1:
        a.e('s_mov_b64 exec, vcc'); p1loads(PA); a.e('s_mov_b64 exec, -1')
        spin(101); zra()
        a.e('s_waitcnt vmcnt(0)')
        tb(PA); red(PA); tagchk(PA, L('P1R'))
        a.e(f's_branch {L("P1OK")}')
    else:
        p1loads(PA); spin(101); zra()
        a.e('s_waitcnt vmcnt(2)')
        tb(PB); red(PB); tagchk(PB, L('P1S'))
        a.e(f's_branch {L("P1OK")}')
        a.label(L('P1S'))
        p1loads(PB); spin(101); zra()
        a.e('s_waitcnt vmcnt(2)')
        tb(PA); red(PA); tagchk(PA, L('P1R'))
        a.e(f's_branch {L("P1OK")}')

def km_reread(a, t, dst):
    a.e(f'v_mul_u32_u24 v{t}, 272, v{t}\nv_bfe_u32 v{dst}, v{vL16}, 1, 8\nv_add3_u32 v{t}, v{t}, v{dst}, s{sKMex}')
    a.e(f'ds_read_b64 {vr(dst,2)}, v{t}')

def hop_consts(a):
    a.e(f'v_lshlrev_b32 v{vMA+2}, 1, v{vMA+2}\nv_add_u32 v{vMA+2}, {L_TB}, v{vMA+2}\nv_add_u32 v{vMA+3}, {L_TB}, v{vMA+3}')
    a.e(f'ds_read_b128 {vr(vSel,4)}, v{vMA+2}\nds_read_b32 v{vSelI}, v{vMA+2} offset:16\nds_read_b32 v{vMst}, v{vMA+3} offset:512')
    km_reread(a, vMA + 1, vMA + 26)
    a.e(f'v_add_u32 v{vMA}, {L_KX}, v{vL16}\nv_add_u32 v{vMA+1}, s{sJM}, v{vL16}')

def kv_reads(a):
    for i in range(8): a.e(f'ds_read_b128 {vr(vKX+4*i,4)}, v{vMA} offset:{1024*i}')
    for i in range(2): a.e(f'ds_read_b128 {vr(vVX+4*i,4)}, v{vMA+1} offset:{L_VX-L_MX+1024*i}')

def chain_preload(a):
    a.e('s_getpc_b64 s[18:19]')
    a.label('CH_PC')
    a.e('s_add_u32 s18, s18, CH_TABLE-CH_PC\ns_addc_u32 s19, s19, 0')
    a.e(f'v_mul_u32_u24 v127, {NCH*4}, v0')
    for q in range(5): a.e(f'global_load_dwordx4 {vr(4*q,4)}, v127, s[18:19] offset:{16*q}')

def tlb_warm(a, t, dst):
    a.e(f'v_mbcnt_lo_u32_b32 v{t}, -1, 0\nv_mbcnt_hi_u32_b32 v{t}, -1, v{t}\nv_lshlrev_b32 v{t}, 21, v{t}\ns_mov_b64 exec, 3')
    for b in (sWq, sWk, sWv, sWo): a.e(f'global_load_dword v{dst}, v{t}, {sr(b,2)}')
    a.e(f's_lshr_b64 exec, -1, 32\nglobal_load_dword v{dst}, v{t}, {sr(sWs,2)}\ns_mov_b64 exec, -1')

def gen_chain_body(a, pubst='', opts=None):
    o = opts or {}
    a.label('CHAIN')
    SST[0] = 1 if o.get('sst') else 0
    sst(a)
    a.e(f's_lshl_b32 s{sR}, s{sHead}, 2\ns_add_u32 s{sR}, s{sR}, s{sWave}')
    a.e(f's_mov_b32 s{sMex}, 0x000f000f\ns_mov_b32 s{sMex+1}, 0x000f000f\ns_mov_b32 s{sHalf}, 0xff00ff00\ns_mov_b32 s{sHalf+1}, 0xff00ff00')
    a.e(f's_mov_b32 s{sC}, {f32bits(CSC)}')
    for j in range(4): a.e(f's_xor_b32 s{sJ+j}, s{sWave}, {j}\ns_lshl_b32 s{sJ+j}, s{sJ+j}, 11\ns_add_u32 s{sJM+j}, s{sJ+j}, {L_MX}')
    for i in range(4): a.e(f'v_mov_b32 v{20+i}, 0')
    a.e('v_mov_b32 v24, -1')
    a.e(f's_lshl_b32 s{sT0}, s{sHead}, 13\ns_add_u32 s{sT0}, s{sT0}, s{sJ}')
    a.e(f's_add_u32 s{sT1}, s{sT0}, {WS_KX}'); add64(a, sKX, sWs, sT1)
    a.e(f's_add_u32 s{sT1}, s{sT0}, {WS_VX}'); add64(a, sVX, sWs, sT1)
    a.e(f's_lshl_b32 s{sT0}, s{sHead}, 11\ns_lshl_b32 s{sT1}, s{sWave}, 9\ns_add_u32 s{sT0}, s{sT0}, s{sT1}')
    a.e(f's_add_u32 s{sT1}, s{sT0}, {WS_KM - 32*2048}'); add64(a, sKM, sWs, sT1)
    a.e(f's_add_u32 s{sT1}, s{sT0}, {WS_VM - 32*2048}'); add64(a, sVM, sWs, sT1)
    a.e(f's_mul_i32 s{sKMex}, s{sWave}, {2*272}\ns_add_u32 s{sKMex}, s{sKMex}, {L_XQ + 8*272}')
    a.e(f's_mul_i32 s{sT0}, s{sR}, {RS}')
    add64(a, sPld, sWs, sT0); add64(a, sPst0, sPld, imm=128 * RS)
    a.e(f's_lshl_b32 s{sT0}, s{sR}, 6\ns_add_u32 s{sT0}, s{sT0}, {WS_M+8192}'); add64(a, sMst, sWs, sT0)
    a.e(f's_and_b32 s{sT0}, s{sR}, 7\ns_lshl_b32 s{sT0}, s{sT0}, 7'); add64(a, sMld, sMem0, sT0)
    a.e('s_waitcnt vmcnt(0)')
    a.e(f'v_and_b32 v25, 0xf0, v{vL16}\nv_lshlrev_b32 v25, 1, v25\nv_add_u32 v25, {L_TB}, v25\nv_lshrrev_b32 v26, 2, v{vL16}\nv_add_u32 v26, {L_TB}, v26')
    a.e('ds_write_b128 v25, v[12:15]\nds_write_b32 v25, v11 offset:16\nds_write_b32 v26, v10 offset:512\ns_waitcnt lgkmcnt(0)')
    a.e(f'global_load_dwordx2 v[12:13], v18, {sr(sMld,2)}\nglobal_load_dwordx2 v[14:15], v18, {sr(sMld,2)} offset:16')
    def first(a):
        for b in (sPld, sPst0):
            a.e(f'global_store_dwordx4 v{vL16}, v[20:23], {sr(b,2)} sc1\nglobal_store_dwordx4 v{vL16}, v[20:23], {sr(b,2)} offset:1024 sc1')
        a.e(f's_mov_b64 exec, {sr(sMex,2)}')
        for k in range(3):
            a.e(f'global_store_dword v10, v24, {sr(sMst,2)} sc1')
            add64(a, sMst, sMst, imm=8192)
        a.e('s_mov_b64 exec, -1')
        a.e(f's_and_b32 s{sT0}, s{sR}, 7\ns_lshl_b32 s{sT0}, s{sT0}, 10\ns_mov_b32 s{sT1}, {WS_QS}\ns_cmp_lt_u32 s{sR}, 8\ns_cselect_b32 s{sT1}, {WS_M}, s{sT1}\ns_add_u32 s{sT0}, s{sT0}, s{sT1}'); add64(a, sMld, sWs, sT0)
        return 7
    def m0store(a):
        for i in range(4): a.e(f'v_min_u32 v{12+i}, -2, v{12+i}')
        a.e(f'global_store_dwordx4 v{vL16}, v[12:15], {sr(sMld,2)} sc1')
        return 1
    MG = o.get('merged', 0); LD = 'sc1' if MG else ''
    if MG:
        a.e(f's_lshl_b32 s{sT0}, s{sHead}, 7\ns_add_u32 s{sT0}, s{sT0}, {WS_FL+FL_KV}'); add64(a, sFlKV, sWs, sT0)
        a.e(f's_lshl_b32 s{sT0}, s{sWave}, 2\ns_add_u32 s{sT0}, s{sT0}, {FL_PROG-FL_KV}'); add64(a, sFlP, sFlKV, sT0)
    def kv0(a):
        if MG:
            a.e(f'v_mov_b32 v{vZ}, 0\ns_mov_b32 s{sT2}, 1')
            kv_poll(a, 'CH_KV0', sT2, 24)
        a.e(f's_add_u32 s{sT0}, s{sJ}, {L_KX}\ns_mov_b32 m0, s{sT0}\ns_nop 0')
        a.e(f'global_load_lds_dwordx4 v{vL16}, {sr(sKX,2)} {LD}\nglobal_load_lds_dwordx4 v{vL16}, {sr(sKX,2)} offset:1024 {LD}')
        a.e(f's_add_u32 s{sT0}, s{sT0}, 8192\ns_mov_b32 m0, s{sT0}\ns_nop 0')
        a.e(f'global_load_lds_dwordx4 v{vL16}, {sr(sVX,2)} {LD}\nglobal_load_lds_dwordx4 v{vL16}, {sr(sVX,2)} offset:1024 {LD}')
        return 4
    def signal(a):
        a.e(f'v_mov_b32 v20, 8\nv_mov_b32 v21, 1\ns_cmp_eq_u32 s{sWave}, 0\ns_cselect_b64 exec, 1, 0')
        a.e(f'global_atomic_add v20, v21, {sr(sDbg,2)}\ns_mov_b64 exec, -1')
        return 0
    def rendezvous(a):
        if 'mark' in o: o['mark2'](a, 5) if 'mark2' in o else None
        a.e(f's_mov_b32 s{sSpin}, 0\nv_mov_b32 v20, 0')
        a.label('CH_RV')
        a.e(f'global_load_dwordx4 v[24:27], v20, {sr(sDbg,2)} sc1')
        a.e(f's_add_u32 s{sSpin}, s{sSpin}, 1\ns_cmp_gt_u32 s{sSpin}, {SPIN_MAX}\ns_cbranch_scc1 CH_ABORT')
        a.e('s_waitcnt vmcnt(0)')
        a.e(f'v_readfirstlane_b32 s{sT0}, v26\nv_readfirstlane_b32 s{sMode}, v25\ns_nop 1\ns_cmp_ge_u32 s{sT0}, 32\ns_cbranch_scc0 CH_RV')
        if MG: a.e(f'v_readfirstlane_b32 s{sT0}, v27\ns_nop 1\ns_cmp_eq_u32 s{sT0}, 0\ns_cbranch_scc1 CH_RV')
        if MG: a.e(f'v_mov_b32 v20, {DB_R2}\nv_mov_b32 v21, 1\ns_cmp_eq_u32 s{sWave}, 0\ns_cselect_b64 exec, 1, 0\nglobal_atomic_add v20, v21, {sr(sDbg,2)}\ns_mov_b64 exec, -1')
        n = kv0(a)
        a.e(f's_add_u32 s{sT0}, s{sJ}, {L_MX}\ns_mov_b32 m0, s{sT0}')
        a.e(f's_and_b32 s{sT0}, s{sR}, 31\ns_lshl_b32 s{sT0}, s{sT0}, 10\ns_add_u32 s{sT0}, s{sT0}, {WS_M}'); add64(a, sMld, sWs, sT0)
        for b in (sPld, sPst0):
            a.e(f'global_load_lds_dwordx4 v{vL16}, {sr(b,2)} sc1\nglobal_load_lds_dwordx4 v{vL16}, {sr(b,2)} offset:1024 sc1')
        a.e(f'global_load_lds_dwordx4 v{vL16}, {sr(sMld,2)} sc1')
        return n + 5
    gen_weight_load(a, {'first': first, 0: m0store, ('rb', 1): signal, 14: rendezvous})
    for i in range(2): a.e(f'v_mov_b32 v{vZ+i}, 0')
    a.e(f's_mov_b32 s{sStep}, 0\ns_mov_b32 s100, 0\ns_mov_b32 s101, 0')
    step_bases(a)
    a.e('s_waitcnt vmcnt(0) lgkmcnt(0)\ns_barrier')
    a.e(f'v_add_u32 v{vMA}, {L_KX}, v{vL16}\nv_add_u32 v{vMA+1}, s{sJM}, v{vL16}')
    kv_reads(a)
    if o.get('sst'):
        sst(a)
        a.e(f's_waitcnt lgkmcnt(0)\nv_mov_b32 v20, {L_MISC}\ns_lshl_b32 s{sT0}, s{sWave}, 6\nv_add_u32 v20, s{sT0}, v20')
        for k in range(12): a.e(f's_sub_u32 s{sT0}, s{72+2*k}, s{3 if o.get("merged") else 55}\nv_mov_b32 v21, s{sT0}\nds_write_b32 v20, v21 offset:{64+4*k}')
        a.e('s_waitcnt lgkmcnt(0)\ns_mov_b32 s96, 0\ns_mov_b32 s97, 0')
    if o.get('stamps') or o.get('time'):
        a.e(('' if o.get('merged') else 's_memrealtime s[2:3]\n') + f's_memtime s[72:73]\ns_waitcnt lgkmcnt(0)\ns_mov_b32 s96, s72\ns_mov_b32 s97, s72\ns_mov_b32 s74, s72\ns_mov_b32 s76, s72')
        a.e(f'v_mov_b32 v20, {L_MISC}\nv_lshrrev_b32 v21, 2, v{vL16}\nv_add_u32 v20, v20, v21\nv_mov_b32 v21, 0\nds_write_b32 v20, v21 offset:64\ns_waitcnt lgkmcnt(0)\ns_barrier')
    if 'mark' in o: o['mark'](a, 6)
    a.e(f's_cmp_lg_u32 s{sMode}, 0\ns_cbranch_scc1 ENTRY_slow')
    gen_loop(a, '', 'fast', pubst, o)
    gen_loop(a, 'sc1', 'slow', pubst, o)

def emit_table(a, name, rows):
    a.e('.p2align 6')
    a.label(name)
    for r in rows:
        a.e('.long ' + ', '.join(hex(x) for x in r))

def chain_finish(a, pubst='sc1', flag=True):
    add64(a, sKM, sKM, imm=32 * 2048); add64(a, sVM, sVM, imm=32 * 2048)
    a.e(f'v_lshrrev_b32 v{vMA+1}, 9, v{vL16}\ns_waitcnt lgkmcnt(0)')
    km_reread(a, vMA + 1, vMA + 24)
    a.e(f'v_lshrrev_b32 v{vSm}, 1, v{vL16}\nv_mov_b32 v{vSm+1}, 64')
    a.e(f'global_store_dwordx2 v{vSm}, {vr(vSm+2,2)}, {sr(sVM,2)} {pubst}\ns_waitcnt lgkmcnt(0)\nglobal_store_dwordx2 v{vSm}, {vr(vMA+24,2)}, {sr(sKM,2)} {pubst}\ns_waitcnt vmcnt(0)\ns_barrier')
    if flag: a.e(f's_cmp_eq_u32 s{sWave}, 0\ns_cselect_b64 exec, 1, 0\nglobal_store_dword v{vZ}, v{vSm+1}, {sr(sFlP,2)} sc1\ns_mov_b64 exec, -1')
```

```python
import re

class Asm:
    def __init__(self):
        self.lines = []
        self.uid = 0
    def e(self, s):
        for ln in s.split('\n'):
            ln = ln.strip()
            if ln:
                self.lines.append(ln)
    def label(self, name):
        self.lines.append(name + ':')
    def newlabel(self, p='L'):
        self.uid += 1
        return f'{p}_{self.uid}'
    def text(self):
        out = []
        for ln in self.lines:
            if ln.endswith(':') or ln.startswith('.'):
                out.append(ln)
            else:
                out.append('    ' + ln)
        return '\n'.join(out) + '\n'

def vr(b, n=1):
    return f'v{b}' if n == 1 else f'v[{b}:{b+n-1}]'
def ar(b, n=1):
    return f'a{b}' if n == 1 else f'a[{b}:{b+n-1}]'
def sr(b, n=1):
    return f's{b}' if n == 1 else f's[{b}:{b+n-1}]'

_REG = re.compile(r'^(-|abs\()?([vas])(\d+|\[(\d+):(\d+)\])\)?$')
def regs_of(op):
    op = op.strip()
    if op in ('vcc', 'vcc_lo', 'vcc_hi'): return {('s', 'vcc')}
    if op in ('exec', 'exec_lo', 'exec_hi'): return {('s', 'exec')}
    if op == 'm0': return {('s', 'm0')}
    m = _REG.match(op)
    if not m: return set()
    k = m.group(2)
    if m.group(4) is not None:
        return {(k, i) for i in range(int(m.group(4)), int(m.group(5)) + 1)}
    return {(k, int(m.group(3)))}

TRANS = ('v_exp_f32', 'v_log_f32', 'v_rcp_f32', 'v_rsq_f32', 'v_sqrt_f32', 'v_sin_f32', 'v_cos_f32')

class Ins:
    def __init__(self, text):
        self.text = text
        t = text.split(';')[0].strip()
        parts = t.split(None, 1)
        self.op = parts[0]
        rest = parts[1] if len(parts) > 1 else ''
        ops = [o.strip() for o in rest.split(',')]
        mods = ''
        if ops:
            last = ops[-1].split(None, 1)
            if len(last) > 1:
                ops[-1] = last[0]; mods = last[1]
        self.ops = [o for o in ops if o]
        self.mods = mods
        op = self.op
        self.kind = 'other'
        self.w = set(); self.r = set(); self.rA = set(); self.rC = set(); self.passes = 0
        self.dpp = ('_dpp' in op) or ('row_' in mods) or ('quad_perm' in mods)
        R = [regs_of(o) for o in self.ops]
        if op.startswith('v_mfma') or op.startswith('v_smfmac'):
            self.kind = 'mfma'
            self.passes = 8 if '32x32' in op else (2 if '4x4' in op else 4)
            self.w = R[0]
            if op.startswith('v_smfmac'):
                self.rC = R[0]; self.rA = R[1] | R[2] | R[3]
            else:
                self.rC = R[3]; self.rA = R[1] | R[2]
            self.r = self.rA | self.rC
        elif op.startswith('v_'):
            self.kind = 'valu'
            if op.startswith('v_permlane') and 'swap' in op:
                self.w = R[0] | R[1]; self.r = R[0] | R[1]
            elif op.startswith('v_cmp'):
                self.w = R[0]; self.r = set().union(*R[1:])
            elif op.startswith(('v_add_co', 'v_sub_co', 'v_addc_co', 'v_subb_co', 'v_div_scale')):
                self.w = R[0] | R[1]; self.r = set().union(*R[2:])
            else:
                self.w = R[0]; self.r = set().union(*R[1:]) if len(R) > 1 else set()
                if op.startswith(('v_fmac', 'v_dot2c', 'v_writelane')) or (self.dpp):
                    self.r |= R[0]
                if op.startswith('v_cndmask') and (len(R) == 3):
                    self.r |= {('s', 'vcc')}
        elif op.startswith('ds_'):
            self.kind = 'ds'
            if op.startswith(('ds_read', 'ds_bpermute', 'ds_permute', 'ds_swizzle')):
                self.w = R[0]; self.r = set().union(*R[1:])
            else:
                self.r = set().union(*R)
        elif op.startswith(('global_', 'buffer_', 'flat_')):
            self.kind = 'vmem'
            if 'load' in op:
                if 'lds' in mods.split() or '_lds_' in op:
                    self.r = set().union(*R) | {('s', 'm0')}
                else:
                    self.w = R[0]; self.r = set().union(*R[1:])
            elif 'atomic' in op and ('sc0' in mods.split()) and op.startswith('global_'):
                self.w = R[0]; self.r = set().union(*R[1:])
            else:
                self.r = set().union(*R)
            self.wide_store = ('store' in op and ('x3' in op or 'x4' in op))
            if 'store' in op:
                self.sdata = R[1] if op.startswith('global_') else R[0]
        elif op.startswith('s_'):
            self.kind = 'salu'
            if op.startswith(('s_cmp', 's_cbranch', 's_branch', 's_waitcnt', 's_nop', 's_barrier', 's_endpgm', 's_sleep', 's_setprio')):
                self.r = set().union(*R) if R else set()
            else:
                self.w = R[0] if R else set(); self.r = set().union(*R[1:]) if len(R) > 1 else set()
                if 'saveexec' in op: self.w |= {('s', 'exec')}
    def states(self):
        if self.op == 's_nop':
            return int(self.ops[0], 0) + 1
        return 1

def _vec(s): return {x for x in s if x[0] in 'va'}
def _sca(s): return {x for x in s if x[0] == 's'}

def need(p, c):
    n = 0
    if p.kind == 'valu':
        pw = _vec(p.w); ps = _sca(p.w)
        if c.kind == 'mfma' and pw & c.r: n = max(n, 2)
        if c.kind == 'valu':
            if c.dpp and pw & c.r: n = max(n, 2)
            if c.op.startswith('v_permlane') and pw & c.r: n = max(n, 2)
            if c.op.startswith(('v_readlane', 'v_readfirstlane')) and pw & c.r: n = max(n, 1)
            if p.op.startswith(TRANS) and not c.op.startswith(TRANS) and pw & c.r: n = max(n, 1)
            if ps & c.r: n = max(n, 4 if c.op.startswith(('v_readlane', 'v_writelane')) else 2)
        if c.kind == 'vmem' and ps & c.r: n = max(n, 5)
        if c.kind == 'salu' and ps & c.r and not c.op.startswith('s_cbranch'): n = max(n, 1)
    if p.kind == 'mfma':
        base = {2: (2, 4, 5, 1), 4: (0, 6, 8, 3), 8: (0, 10, 12, 7)}[p.passes]
        if c.kind == 'mfma':
            if p.w & c.rC:
                if p.w == c.rC and p.passes == c.passes: n = max(n, base[0])
                else: n = max(n, base[1])
            if p.w & c.rA: n = max(n, base[2])
            if (p.w & c.w) and not (p.w & c.rC): n = max(n, base[1])
        elif c.kind in ('valu', 'ds', 'vmem'):
            if p.w & (c.r | c.w): n = max(n, base[2])
            if c.kind == 'valu' and (p.rC & c.w): n = max(n, base[3])
    if p.kind == 'vmem' and getattr(p, 'wide_store', False):
        if c.kind == 'valu' and p.sdata & c.w: n = max(n, 2)
        elif c.kind in ('ds', 'vmem', 'mfma') and p.sdata & c.w: n = max(n, 1)
    if p.kind == 'salu' and ('s', 'm0') in p.w and c.kind == 'vmem' and ('s', 'm0') in c.r: n = max(n, 1)
    return n

def check(lines, name=''):
    ins = []; labels = {}
    for ln in lines:
        if ln.endswith(':'):
            labels[ln[:-1]] = len(ins); continue
        if ln.startswith('.') or ln.startswith(';'): continue
        ins.append(Ins(ln))
    probs = []
    def scan(seq, start):
        for ci in range(start, len(seq)):
            c = seq[ci]; d = 0; nM = 0; tail = 0
            for pi in range(ci - 1, max(-1, ci - 22), -1):
                p = seq[pi]
                nd = need(p, c)
                eff = d
                if p.kind == 'mfma' and p.passes == 4 and nM >= 2: eff = max(d, 4 * nM + tail - 1)
                if nd > eff:
                    probs.append(f'{name}: need {nd} have {eff}: [{p.text}] -> [{c.text}]')
                d += p.states()
                if p.kind == 'mfma' and p.passes >= 4: nM += 1
                elif nM == 0: tail += p.states()
                if d >= 20: break
                if p.op in ('s_branch', 's_endpgm') and pi != getattr(scan, 'joint', -1): break
    scan.joint = -1
    scan(ins, 0)
    for i, x in enumerate(ins):
        if x.op.startswith(('s_cbranch', 's_branch')):
            t = labels.get(x.ops[0])
            if t is None: continue
            pre = ins[max(0, i - 21): i + 1]
            for k in range(len(pre) - 2, -1, -1):
                if pre[k].op in ('s_branch', 's_endpgm'):
                    pre = pre[k + 1:]; break
            post = []
            for y in ins[t: t + 21]:
                post.append(y)
                if y.op in ('s_branch', 's_endpgm'): break
            seq = pre + post
            scan.joint = len(pre) - 1
            scan(seq, len(pre))
            scan.joint = -1
    seen = []
    for p in probs:
        if p not in seen: seen.append(p)
    return seen
```

```python
from gen_core import *
from gen_chain import *

WS_O   = WS_END1
WS_QB  = WS_O + 64 * 2 * 144 * 1024
WS_G   = WS_QB + 64 * 2 * 48 * 1024
WS_SCR = WS_G + 8192
WS_WF  = WS_SCR + 65536
WS_END = WS_WF + 16 * 4 * 72 * 1024
assert WS_END <= (256 << 20)

sX, sWqkv, sWob, sGate, sOut = 74, 76, 78, 80, 82
def load_worker_ptrs(a):
    a.e(f's_load_dwordx2 s[{sX}:{sX+1}], s[0:1], {KA["x"]}\ns_load_dwordx4 s[{sWqkv}:{sWqkv+3}], s[0:1], {KA["wqkv"]}\ns_load_dwordx4 s[{sGate}:{sGate+3}], s[0:1], {KA["gate"]}')
def load_chain_ptrs(a):
    a.e(f's_load_dwordx4 s[4:7], s[0:1], {KA["Wq"]}\ns_load_dwordx4 s[8:11], s[0:1], {KA["Wv"]}\ns_load_dwordx2 s[12:13], s[0:1], {KA["mem0"]}\ns_load_dwordx2 s[14:15], s[0:1], {KA["dbg"]}\ns_load_dwordx2 s[16:17], s[0:1], {KA["ws"]}')

def lane_id(a, d):
    a.e(f'v_mbcnt_lo_u32_b32 v{d}, -1, 0\nv_mbcnt_hi_u32_b32 v{d}, -1, v{d}')

def gen_w1(a, st='', publish=None, tag='W1', preloop=None, NB=4, plainT=False, PF=6):
    L = lambda x: f'{tag}_{x}'
    sTask, sCombo, sStr, sMod, sSeg, sOstr, sTT, sI, sBuf = 26, 27, 28, 29, 30, 31, 32, 33, 34
    sOb, sXb, sXb2 = 36, 38, 40
    sNb = 42
    sOr = 44
    a.e(f's_lshr_b32 s{sCombo}, s{sTask}, 1\ns_and_b32 s{sSeg}, s{sTask}, 1\ns_and_b32 s{sT0}, s{sCombo}, 31\ns_lshr_b32 s{sT1}, s{sCombo}, 5')
    a.e(f's_mov_b32 s{sStr}, 8192\ns_mov_b32 s{sSRD+2}, {4<<20}\ns_mov_b32 s{sSRD+3}, 0x20000\ns_mov_b32 s{sMod}, 0')
    a.e(f's_mov_b32 s{sOstr}, {2*32*8192}\ns_mov_b32 s{sTT}, 4096')
    a.e(f's_lshl_b32 s{sT2}, s{sT0}, 13\ns_lshl_b32 s{sT3}, s{sWave}, 10')
    lk, lv, lq, lb, ld = [L(x) for x in ('k', 'v', 'q', 'b', 'dec')]
    a.e(f's_cmp_eq_u32 s{sT1}, 1\ns_cbranch_scc1 {lv}\ns_cmp_eq_u32 s{sT1}, 2\ns_cbranch_scc1 {lq}\ns_cmp_eq_u32 s{sT1}, 3\ns_cbranch_scc1 {lb}')
    a.e(f's_mov_b32 s{sSRD}, s{sWk}\ns_and_b32 s{sSRD+1}, s{sWk+1}, 0xffff\ns_add_u32 s{sT2}, s{sT2}, {WS_KX}\ns_branch {ld}')
    a.label(lv)
    a.e(f's_mov_b32 s{sSRD}, s{sWv}\ns_and_b32 s{sSRD+1}, s{sWv+1}, 0xffff\ns_add_u32 s{sT2}, s{sT2}, {WS_VX}\ns_mov_b32 s{sMod}, 1\ns_lshl_b32 s{sT3}, s{sT3}, 1\ns_mov_b32 s{sTT}, 1024\ns_branch {ld}')
    a.label(lq)
    a.e(f's_mov_b32 s{sSRD}, s{sWq}\ns_and_b32 s{sSRD+1}, s{sWq+1}, 0xffff\ns_add_u32 s{sT2}, s{sT2}, {WS_QX}\ns_branch {ld}')
    a.label(lb)
    a.e(f's_mov_b32 s{sSRD}, s{sWqkv}\ns_and_b32 s{sSRD+1}, s{sWqkv+1}, 0xffff\ns_mov_b32 s{sSRD+2}, {512*3072}\ns_mov_b32 s{sStr}, 3072')
    a.e(f's_lshl_b32 s{sT2}, s{sT0}, 12\ns_add_u32 s{sT2}, s{sT2}, {WS_QB}\ns_mov_b32 s{sOstr}, {2*2*48*1024}\ns_mov_b32 s{sTT}, {48*1024}')
    a.label(ld)
    a.e(f's_add_u32 s{sT2}, s{sT2}, s{sT3}\ns_lshr_b32 s{sT3}, s{sOstr}, 1\ns_mul_i32 s{sT3}, s{sT3}, s{sSeg}\ns_add_u32 s{sT2}, s{sT2}, s{sT3}')
    add64(a, sOr, sWs, sT2)
    add64(a, sOb, sWs, imm=WS_SCR)
    vl, vn, vg, vL = 1, 2, 3, 4
    vGo, vWr, vS0_, vS1_ = 5, 6, 7, 8
    vXo = 10
    vRd = 18
    vO2 = 9
    lane_id(a, vl)
    a.e(f'v_and_b32 v{vn}, 15, v{vl}\nv_lshrrev_b32 v{vg}, 4, v{vl}\nv_lshlrev_b32 v{vL}, 4, v{vl}')
    a.e(f'v_add_u32 v{vO2}, s{sTT}, v{vL}')
    a.e(f'v_lshlrev_b32 v{vGo}, 3, v{vg}\nv_mul_lo_u32 v{vGo}, v{vGo}, s{sStr}\nv_lshlrev_b32 v22, 4, v{vn}\nv_add_u32 v{vGo}, v{vGo}, v22\ns_lshl_b32 s{sT0}, s{sT0}, 8\nv_add_u32 v{vGo}, s{sT0}, v{vGo}')
    a.e(f'v_mov_b32 v{vS0_}, 0x05040100\nv_mov_b32 v{vS1_}, 0x07060302')
    a.e(f's_lshl_b32 s{sT0}, s{sWave}, 7\ns_mul_i32 s{sT0}, s{sT0}, s{sStr}')
    for u in range(4):
        for j in range(8):
            a.e(f'buffer_load_dwordx4 {vr(32+u*32+j*4,4)}, v{vGo}, {sr(sSRD,4)}, s{sT0} offen')
            a.e(f's_add_u32 s{sT0}, s{sT0}, s{sStr}')
        if u < 3: a.e(f's_mul_i32 s{sT1}, s{sStr}, 24\ns_add_u32 s{sT0}, s{sT0}, s{sT1}')
    a.e(f's_lshl_b32 s{sT0}, s{sWave}, 12')
    a.e(f'v_lshrrev_b32 v22, 2, v{vn}\nv_mul_u32_u24 v22, {32768+16}, v22\nv_and_b32 v23, 3, v{vn}\nv_lshlrev_b32 v23, 6, v23\nv_lshlrev_b32 v24, 8, v{vg}\nv_add3_u32 v22, v22, v23, v24')
    a.e(f's_cmp_eq_u32 s{sMod}, 1\ns_cselect_b64 vcc, -1, 0\nv_cndmask_b32 v{vWr}, v22, v{vL}, vcc\nv_add_u32 v{vWr}, s{sT0}, v{vWr}\nv_add_u32 v25, 65536, v{vWr}')
    for i in range(8):
        a.e(f's_and_b32 s{sT1}, s{sWave}, 1\ns_lshl_b32 s{sT1}, s{sT1}, 7\ns_add_u32 s{sT1}, s{sT1}, {i*16}\nv_xor_b32 v{vXo+i}, s{sT1}, v{vL}')
    for k in range(4):
        a.e(f'v_add_u32 v22, {4*k}, v{vg}\nv_xor_b32 v22, v22, v{vn}\nv_lshlrev_b32 v22, 4, v22\nv_lshl_add_u32 v{vRd+k}, v{vn}, 10, v22')
    lN, lJ = L('pN'), L('pJ')
    a.e(f's_cmp_eq_u32 s{sMod}, 1\ns_cbranch_scc1 {lN}')
    for mode in (0, 1):
        if mode == 1: a.label(lN)
        c = 0
        for u in range(4):
            a.e(f's_waitcnt vmcnt({8*(3-u)})')
            for t in range(8):
                tq = 160 + 4 * (c % 4); c += 1
                for D in range(4):
                    a.e(f'v_perm_b32 v{tq+D}, v{32+u*32+(2*D+1)*4+(t>>1)}, v{32+u*32+(2*D)*4+(t>>1)}, v{vS1_ if t&1 else vS0_}')
                if mode == 0: a.e(f'ds_write_b128 v{vWr}, {vr(tq,4)} offset:{(t>>2)*16384+u*1024+(t&3)*16}')
                else: a.e(f'ds_write_b128 v{vWr if t<4 else 25}, {vr(tq,4)} offset:{(t&3)*16384+u*1024}')
        if mode == 0: a.e(f's_branch {lJ}')
    a.label(lJ)
    a.e(f's_mov_b32 s{sT1}, {32768+16}\ns_cmp_eq_u32 s{sMod}, 1\ns_cselect_b32 s{sT1}, 32768, s{sT1}\ns_mul_i32 s{sT1}, s{sT1}, s{sWave}\nv_add_u32 v22, s{sT1}, v{vL}')
    a.e('s_waitcnt lgkmcnt(0)\ns_barrier')
    for ks in range(16):
        for tl in range(2):
            a.e(f'ds_read_b128 {ar((ks*2+tl)*4,4)}, v22 offset:{tl*16384+ks*1024}')
        if ks % 4 == 3: a.e('s_waitcnt lgkmcnt(4)')
    a.e('s_waitcnt lgkmcnt(0)\ns_barrier')
    a.e(f's_lshl_b32 s{sT0}, s{sSeg}, 15\ns_lshl_b32 s{sT1}, s{sWave}, 13\ns_add_u32 s{sT0}, s{sT0}, s{sT1}')
    add64(a, sXb, sX, sT0)
    def dma_setup():
        a.e(f's_lshl_b32 s{sT0}, s{sWave}, 13\ns_add_u32 s{sT0}, s{sT0}, s{sNb}\ns_mov_b32 m0, s{sT0}')
        add64(a, sXb2, sXb, imm=4096)
    def dma_op(i):
        r = []
        if i == 4: r.append(f's_add_u32 s{sT0}, m0, 4096\ns_mov_b32 m0, s{sT0}\ns_nop 0')
        r.append(f'global_load_lds_dwordx4 v{vXo+i}, {sr(sXb if i<4 else sXb2,2)} offset:{(i&3)*1024}')
        return '\n'.join(r)
    def dma_adv():
        a.e(f's_cmp_lt_u32 s{sI}, {32-NB}\ns_cselect_b32 s{sT1}, 65536, 0')
        add64(a, sXb, sXb, sT1)
        a.e(f's_add_u32 s{sNb}, s{sNb}, 32768\ns_cmp_eq_u32 s{sNb}, {NB*32768}\ns_cselect_b32 s{sNb}, 0, s{sNb}')
    a.e(f's_mov_b32 s{sNb}, 0\ns_mov_b32 s{sI}, 0')
    for k in range(NB - 1):
        dma_setup(); a.e('s_nop 0')
        for i in range(8): a.e(dma_op(i))
        add64(a, sXb, sXb, imm=65536)
        a.e(f's_add_u32 s{sNb}, s{sNb}, 32768')
    a.e(f's_mov_b32 s{sBuf}, 0')
    if PF:
        a.e(f's_lshr_b32 s{sT0}, s2, 3\ns_and_b32 s{sT0}, s{sT0}, 31\ns_lshl_b32 s{sT0}, s{sT0}, 2\ns_add_u32 s{sT0}, s{sT0}, s{sWave}\ns_lshl_b32 s{sT0}, s{sT0}, 9\nv_lshlrev_b32 v30, 7, v{vl}\nv_add_u32 v30, s{sT0}, v30')
        a.e('s_mov_b64 exec, 15')
        for k in range(NB - 1, PF):
            a.e(f's_add_u32 s46, s{sX}, {k*65536}\ns_addc_u32 s47, s{sX+1}, 0\nglobal_load_dword v31, v30, s[46:47]')
        a.e('s_mov_b64 exec, -1')
    if preloop: preloop(a)
    a.e(f's_waitcnt vmcnt({8*(NB-3)})\ns_barrier')
    RING = 8; FR = 32
    ACC = [64, 80]
    PK = 96
    def rd(f):
        ks, tt = (f % 32) >> 1, f & 1
        return f'ds_read_b128 {vr(FR+4*(f%RING),4)}, v{vRd+(ks&3)} offset:{tt*16384+(ks>>2)*256}'
    PRE = 6
    for f in range(PRE): a.e(rd(f))
    st0 = st
    for mode3 in ((0, 1, 2) if plainT else (0, 1)):
        mode = mode3 & 1; st = '' if mode3 == 2 else st0
        top = L(f'top{mode3}')
        if mode3 == 0:
            a.e(f's_cmp_eq_u32 s{sMod}, 1\ns_cbranch_scc1 {L("top1")}')
            if plainT: a.e(f's_cmp_ge_u32 s{sCombo}, 64\ns_cbranch_scc1 {L("top2")}')
        a.label(top)
        for ph in range(2):
            acc = ACC[ph]; prev = ACC[ph ^ 1]
            side = []
            if mode == 0:
                for tt in range(2):
                    for tl in range(2):
                        b = prev + (tt * 2 + tl) * 4
                        side.append(f'v_cvt_pk_bf16_f32 v{PK+tt*4+tl*2}, v{b}, v{b+1}\nv_cvt_pk_bf16_f32 v{PK+tt*4+tl*2+1}, v{b+2}, v{b+3}')
            else:
                for tl in range(2):
                    for tt in range(2):
                        b = prev + (tt * 2 + tl) * 4
                        side.append(f'v_cvt_pk_bf16_f32 v{PK+tl*4+tt*2}, v{b}, v{b+1}\nv_cvt_pk_bf16_f32 v{PK+tl*4+tt*2+1}, v{b+2}, v{b+3}')
            side.append(f'global_store_dwordx4 v{vL}, {vr(PK,4)}, {sr(sOb,2)} {st}' if not os.environ.get('NOST') else f'global_store_dword v{vL}, v{PK}, {sr(sOb,2)}')
            side.append((f'global_store_dwordx4 v{vO2}, {vr(PK+4,4)}, {sr(sOb,2)} {st}' if not os.environ.get('NOST') else f'global_store_dword v{vL}, v{PK}, {sr(sOb,2)}') + f'\ns_add_u32 s{sOb}, s{sOb}, s{sOstr}\ns_addc_u32 s{sOb+1}, s{sOb+1}, 0\ns_cmp_eq_u32 s{sI}, 0\ns_cselect_b64 {sr(sOb,2)}, {sr(sOr,2)}, {sr(sOb,2)}')
            for f in range(32):
                ks, tt = f >> 1, f & 1
                if f == 16:
                    a.e(f's_waitcnt vmcnt({2+10*(NB-3)+((NB-2) if PF else 0)})\ns_barrier')
                    if publish: publish(a, sI)
                    dma_setup()
                if f + PRE == 32:
                    a.e(f's_add_u32 s{sBuf}, s{sBuf}, 32768\ns_cmp_eq_u32 s{sBuf}, {NB*32768}\ns_cselect_b32 s{sT1}, {1-NB}, 1\ns_cselect_b32 s{sBuf}, 0, s{sBuf}\ns_lshl_b32 s{sT1}, s{sT1}, 15')
                    for k in range(4): a.e(f'v_add_u32 v{vRd+k}, s{sT1}, v{vRd+k}')
                a.e(rd(f + PRE))
                a.e(f's_waitcnt lgkmcnt({PRE})')
                for tl in range(2):
                    d = acc + (tt * 2 + tl) * 4
                    W = ar((ks * 2 + tl) * 4, 4); X = vr(FR + 4 * (f % RING), 4)
                    A, B = (W, X) if mode == 0 else (X, W)
                    a.e(f'v_mfma_f32_16x16x32_bf16 {vr(d,4)}, {A}, {B}, {"0" if ks==0 else vr(d,4)}')
                if 4 <= f < 4 + 2 * len(side) and f % 2 == 0: a.e(side[(f - 4) // 2])
                if 16 <= f < 32 and f % 2 == 0: a.e(dma_op((f - 16) // 2))
            if PF:
                a.e(f's_add_u32 s{sT1}, s{sI}, {PF}\ns_min_u32 s{sT1}, s{sT1}, 31\ns_lshl_b32 s{sT1}, s{sT1}, 16\ns_add_u32 s46, s{sX}, s{sT1}\ns_addc_u32 s47, s{sX+1}, 0\ns_mov_b64 exec, 15\nglobal_load_dword v31, v30, s[46:47]\ns_mov_b64 exec, -1')
            dma_adv()
            a.e(f's_add_u32 s{sI}, s{sI}, 1')
        a.e(f's_cmp_lt_u32 s{sI}, 32\ns_cbranch_scc1 {top}')
        a.e('s_nop 7')
        prev = ACC[1]
        for x in range(2):
            for y in range(2):
                tt, tl = (x, y) if mode == 0 else (y, x)
                b = prev + (tt * 2 + tl) * 4
                a.e(f'v_cvt_pk_bf16_f32 v{PK+x*4+y*2}, v{b}, v{b+1}\nv_cvt_pk_bf16_f32 v{PK+x*4+y*2+1}, v{b+2}, v{b+3}')
        a.e(f'global_store_dwordx4 v{vL}, {vr(PK,4)}, {sr(sOb,2)} {st}\nglobal_store_dwordx4 v{vO2}, {vr(PK+4,4)}, {sr(sOb,2)} {st}')
        a.e(f's_branch {L("end")}')
    a.label(L('end'))
    a.e('s_waitcnt vmcnt(0) lgkmcnt(0)\ns_barrier')

def gen_gate(a, st=''):
    lane_id(a, 1)
    a.e('v_and_b32 v2, 15, v1\nv_lshrrev_b32 v3, 4, v1\nv_lshlrev_b32 v4, 8, v3\nv_lshl_add_u32 v5, v2, 10, v4')
    a.e(f's_lshl_b32 s{sT0}, s26, 14'); add64(a, 28, sX, sT0)
    for i in range(16):
        a.e(f'global_load_dwordx4 {vr(8+4*i,4)}, v5, s[28:29] offset:{16*i}')
    for i in range(16):
        a.e(f'global_load_dwordx4 {vr(72+4*i,4)}, v4, {sr(sGate,2)} offset:{16*i}')
    a.e('v_mov_b32 v6, 0\nv_mov_b32 v7, 0\ns_waitcnt vmcnt(0)')
    for i in range(64):
        a.e(f'v_dot2c_f32_bf16 v{6+(i&1)}, v{8+i}, v{72+i}')
    a.e('s_nop 2\nv_add_f32 v6, v6, v7\nv_mov_b32 v7, v6\ns_nop 1\nv_permlane16_swap_b32 v6, v7\nv_add_f32 v6, v6, v7\nv_mov_b32 v7, v6\ns_nop 1\nv_permlane32_swap_b32 v6, v7\nv_add_f32 v6, v6, v7')
    a.e(f'v_mul_f32 v6, {hex(f32bits(-math.log2(math.e)))}, v6\nv_exp_f32 v6, v6\ns_nop 0\nv_add_f32 v6, 1.0, v6\nv_rcp_f32 v6, v6')
    a.e(f's_lshl_b32 s{sT0}, s26, 6\ns_add_u32 s{sT0}, s{sT0}, {WS_G}'); add64(a, 28, sWs, sT0)
    a.e(f'v_lshlrev_b32 v2, 2, v2\ns_mov_b64 exec, 0xffff\nglobal_store_dword v2, v6, s[28:29] {st}\ns_mov_b64 exec, -1')

def gen_battn(a, st='', ld=''):
    CB = 0.25 * math.log2(math.e)
    lane_id(a, 1)
    a.e('v_and_b32 v2, 15, v1\nv_lshrrev_b32 v3, 4, v1')
    a.e(f's_lshr_b32 s27, s26, 4\ns_and_b32 s28, s26, 15\ns_lshl_b32 s29, s27, 4\nv_add_u32 v4, s29, v2')
    a.e(f's_lshl_b32 s{sT0}, s28, 10\ns_add_u32 s{sT0}, s{sT0}, {WS_QB}'); add64(a, 30, sWs, sT0)
    add64(a, 32, 30, imm=16 * 1024); add64(a, 34, 30, imm=32 * 1024)
    a.e(f's_mov_b32 s36, {48*1024}\nv_lshlrev_b32 v5, 8, v3')
    for w in range(8):
        a.e(f'v_subrev_u32 v6, {2*w}, v4\nv_max_i32 v6, 0, v6\nv_lshrrev_b32 v7, 4, v6\nv_mul_lo_u32 v7, v7, s36\nv_and_b32 v6, 15, v6\nv_lshl_add_u32 v6, v6, 4, v5\nv_add_u32 v{8+w}, v6, v7')
    a.e(f'global_load_dwordx4 v[16:19], v8, s[30:31] {ld}')
    for w in range(8): a.e(f'global_load_dwordx4 {vr(20+4*w,4)}, v{8+w}, s[32:33] {ld}')
    for w in range(8): a.e(f'global_load_dwordx4 {vr(52+4*w,4)}, v{8+w}, s[34:35] {ld}')
    add64(a, 38, sWs, imm=WS_G)
    a.e(f'v_lshlrev_b32 v6, 2, v4\nglobal_load_dword v84, v6, s[38:39] {ld}')
    for w in range(8): a.e(f'v_mov_b32 v{88+w}, 0')
    a.e('s_waitcnt vmcnt(9)')
    for i in range(4):
        for w in range(8): a.e(f'v_dot2c_f32_bf16 v{88+w}, v{16+i}, v{20+4*w+i}')
    a.e('s_nop 2')
    for w in range(8): a.e(f'v_mov_b32 v{96+w}, v{88+w}')
    a.e('s_nop 1')
    for w in range(8): a.e(f'v_permlane16_swap_b32 v{88+w}, v{96+w}')
    for w in range(8): a.e(f'v_add_f32 v{88+w}, v{88+w}, v{96+w}')
    a.e(f's_mov_b32 s36, {hex(f32bits(CB))}\nv_mov_b32 v104, {hex(f32bits(-1e9*math.log2(math.e)))}')
    for w in range(8): a.e(f'v_mul_f32 v{88+w}, s36, v{88+w}')
    for w in range(1, 8):
        a.e(f'v_cmp_le_u32 vcc, {2*w}, v4\ns_nop 1\nv_cndmask_b32 v{88+w}, v104, v{88+w}, vcc')
    a.e('v_max3_f32 v105, v88, v89, v90\nv_max3_f32 v106, v91, v92, v93\nv_max3_f32 v105, v105, v94, v95\nv_max_f32 v105, v105, v106')
    for w in range(8): a.e(f'v_sub_f32 v{88+w}, v{88+w}, v105')
    for w in range(8): a.e(f'v_exp_f32 v{88+w}, v{88+w}')
    a.e('s_nop 0\nv_add_f32 v105, v88, v89\nv_add_f32 v106, v90, v91\nv_add_f32 v107, v92, v93\nv_add_f32 v108, v94, v95\nv_add_f32 v105, v105, v106\nv_add_f32 v107, v107, v108\nv_add_f32 v105, v105, v107\nv_rcp_f32 v105, v105')
    a.e('s_waitcnt vmcnt(0)\nv_sub_f32 v84, 1.0, v84\nv_mul_f32 v105, v105, v84')
    for w in range(8):
        for i in range(4):
            s_ = 52 + 4 * w + i
            a.e(f'v_lshlrev_b32 v106, 16, v{s_}\nv_and_b32 v107, 0xffff0000, v{s_}')
            if w == 0: a.e(f'v_mul_f32 v{112+2*i}, v88, v106\nv_mul_f32 v{113+2*i}, v88, v107')
            else: a.e(f'v_fmac_f32 v{112+2*i}, v{88+w}, v106\nv_fmac_f32 v{113+2*i}, v{88+w}, v107')
    for i in range(8): a.e(f'v_mul_f32 v{112+i}, v{112+i}, v105')
    for i in range(4): a.e(f'v_cvt_pk_bf16_f32 v{120+i}, v{112+2*i}, v{113+2*i}')
    a.e(f's_mul_i32 s{sT0}, s27, {144*1024}\ns_add_u32 s28, s28, 128\ns_lshl_b32 s28, s28, 10\ns_add_u32 s{sT0}, s{sT0}, s28\ns_add_u32 s{sT0}, s{sT0}, {WS_O}'); add64(a, 30, sWs, sT0)
    a.e(f'v_lshlrev_b32 v6, 4, v1\nglobal_store_dwordx4 v6, v[120:123], s[30:31] {st}')

def w3_consts(a, B0):
    lane_id(a, B0 + 4)
    a.e(f'v_lshlrev_b32 v{B0}, 4, v{B0+4}\nv_lshlrev_b32 v{B0+2}, 3, v{B0+4}\nv_and_b32 v{B0+5}, 15, v{B0+4}\nv_lshrrev_b32 v{B0+6}, 4, v{B0+4}')
    a.e(f'v_lshlrev_b32 v{B0+3}, 2, v{B0+5}')
    a.e(f'v_lshrrev_b32 v{B0+7}, 2, v{B0+5}\nv_lshlrev_b32 v{B0+7}, 1, v{B0+7}\nv_and_b32 v{B0+8}, 1, v{B0+5}\nv_add_u32 v{B0+7}, v{B0+7}, v{B0+8}\nv_lshlrev_b32 v{B0+7}, 8, v{B0+7}\nv_lshl_add_u32 v{B0+1}, v{B0+6}, 4, v{B0+7}')
    for r in range(4):
        a.e(f'v_lshl_add_u32 v{B0+7}, v{B0+6}, 2, {r}\nv_cmp_le_u32 s[{84+2*r}:{85+2*r}], v{B0+7}, v{B0+5}')

def gen_w3(a, B0, st='', ld='', wait=None):
    L16, KMO, L8, N4 = B0, B0 + 1, B0 + 2, B0 + 3
    Q = B0 + 4; K = Q + 32; KM = K + 32; V = KM + 16; VM = V + 32; G = VM + 10
    S = G + 2
    T = S + 20
    P = T + 8
    O = Q
    end = P + 12
    a.e(f's_lshl_b32 s{sT0}, s27, 5\ns_add_u32 s{sT0}, s{sT0}, s28')
    a.e(f's_lshl_b32 s{sT1}, s{sT0}, 13\ns_add_u32 s{sT1}, s{sT1}, {WS_QX+4096}'); add64(a, 30, sWs, sT1)
    a.e(f's_lshl_b32 s{sT1}, s{sT0}, 13\ns_add_u32 s{sT1}, s{sT1}, {WS_KX+4096}'); add64(a, 32, sWs, sT1)
    a.e(f's_lshl_b32 s{sT1}, s{sT0}, 13\ns_add_u32 s{sT1}, s{sT1}, {WS_VX+4096}'); add64(a, 34, sWs, sT1)
    a.e(f's_lshl_b32 s{sT1}, s{sT0}, 11\ns_add_u32 s{sT1}, s{sT1}, {WS_KM}'); add64(a, 36, sWs, sT1)
    a.e(f's_lshl_b32 s{sT1}, s{sT0}, 11\ns_add_u32 s{sT1}, s{sT1}, {WS_VM}'); add64(a, 38, sWs, sT1)
    a.e(f's_lshl_b32 s{sT1}, s27, 7\ns_add_u32 s{sT1}, s{sT1}, {WS_G}'); add64(a, 40, sWs, sT1)
    for i in range(8): a.e(f'global_load_dwordx4 {vr(Q+4*i,4)}, v{L16}, s[30:31] offset:{1024*i-4096} {ld}')
    for i in range(8): a.e(f'global_load_dwordx4 {vr(K+4*i,4)}, v{L16}, s[32:33] offset:{1024*i-4096} {ld}')
    for i in range(8): a.e(f'global_load_dwordx4 {vr(V+4*i,4)}, v{L16}, s[34:35] offset:{1024*i-4096} {ld}')
    for qt in range(2): a.e(f'global_load_dword v{G+qt}, v{N4}, s[40:41] offset:{64*qt} {ld}')
    a.e(f's_mul_i32 s{sT0}, s27, {2*144*1024}\ns_lshl_b32 s{sT1}, s28, 12\ns_add_u32 s{sT0}, s{sT0}, s{sT1}\ns_add_u32 s{sT0}, s{sT0}, {WS_O}'); add64(a, 30, sWs, sT0)
    add64(a, 32, 30, imm=144 * 1024)
    a.e(f's_mov_b32 s42, {hex(f32bits(CSC))}\nv_mov_b32 v{VM+8}, 0\nv_mov_b32 v{T+7}, 0xff800000')
    a.e('s_waitcnt vmcnt(10)')
    Sm = [S, S + 8]; Sx = {(0, 0): S + 4, (1, 0): S + 12, (1, 1): S + 16}
    for ks in range(4):
        for (qt, kt), d in Sx.items():
            a.e(f'v_mfma_f32_16x16x32_bf16 {vr(d,4)}, {vr(K+16*kt+4*ks,4)}, {vr(Q+16*qt+4*ks,4)}, {"0" if ks==0 else vr(d,4)}')
    if wait: wait(a)
    for i in range(4): a.e(f'global_load_dwordx4 {vr(KM+4*i,4)}, v{KMO}, s[36:37] offset:{64*i} {ld}')
    for i in range(4): a.e(f'global_load_dwordx2 {vr(VM+2*i,2)}, v{L8}, s[38:39] offset:{512*i} {ld}')
    a.e('s_waitcnt vmcnt(4)')
    for ks in range(4):
        for qt in range(2):
            a.e(f'v_mfma_f32_16x16x32_bf16 {vr(Sm[qt],4)}, {vr(KM+4*ks,4)}, {vr(Q+16*qt+4*ks,4)}, {"0" if ks==0 else vr(Sm[qt],4)}')
    for qt in range(2):
        d = Sx[(qt, qt)]
        for r in range(4): a.e(f'v_cndmask_b32 v{d+r}, v{T+7}, v{d+r}, s[{84+2*r}:{85+2*r}]')
    vals = {0: [Sm[0], Sm[0] + 1] + [Sx[(0, 0)] + r for r in range(4)],
            1: [Sm[1], Sm[1] + 1] + [Sx[(1, 0)] + r for r in range(4)] + [Sx[(1, 1)] + r for r in range(4)]}
    def allred(op, x, y):
        for sw in ('v_permlane16_swap_b32', 'v_permlane32_swap_b32'):
            a.e(f'v_mov_b32 v{T+2}, v{x}\nv_mov_b32 v{T+3}, v{y}\ns_nop 0\n{sw} v{x}, v{T+2}\n{sw} v{y}, v{T+3}\n{op} v{x}, v{x}, v{T+2}\n{op} v{y}, v{y}, v{T+3}')
    for qt in range(2):
        v = vals[qt]; m = T + qt
        a.e(f'v_max3_f32 v{m}, v{v[2]}, v{v[3]}, v{v[4]}')
        rest = v[5:] + v[:2]
        while len(rest) >= 2:
            a.e(f'v_max3_f32 v{m}, v{m}, v{rest[0]}, v{rest[1]}'); rest = rest[2:]
        if rest: a.e(f'v_max_f32 v{m}, v{m}, v{rest[0]}')
    allred('v_max_f32', T, T + 1)
    for qt in range(2):
        a.e(f'v_mul_f32 v{T+qt}, s42, v{T+qt}')
        for x in vals[qt]: a.e(f'v_fma_f32 v{x}, v{x}, s42, -v{T+qt}')
        for x in vals[qt]: a.e(f'v_exp_f32 v{x}, v{x}')
    for qt in range(2):
        v = vals[qt]; b = P + 6 * qt
        a.e(f'v_cvt_pk_bf16_f32 v{b}, v{v[2]}, v{v[3]}\nv_cvt_pk_bf16_f32 v{b+1}, v{v[4]}, v{v[5]}')
        if qt == 0: a.e(f'v_mov_b32 v{b+2}, 0\nv_mov_b32 v{b+3}, 0')
        else: a.e(f'v_cvt_pk_bf16_f32 v{b+2}, v{v[6]}, v{v[7]}\nv_cvt_pk_bf16_f32 v{b+3}, v{v[8]}, v{v[9]}')
        a.e(f'v_cvt_pk_bf16_f32 v{b+4}, v{v[0]}, v{v[1]}\nv_mov_b32 v{b+5}, 0')
    a.e(f'v_mov_b32 v{T+4}, 0\nv_mov_b32 v{T+5}, v{P+4}\nv_mov_b32 v{T+6}, 0\nv_mov_b32 v{T+7}, v{P+10}')
    for qt in range(2):
        v = vals[qt]; m = T + qt
        a.e(f'v_add_f32 v{m}, v{v[0]}, v{v[1]}')
        for x in v[2:]: a.e(f'v_add_f32 v{m}, v{m}, v{x}')
    a.e('s_waitcnt vmcnt(0)')
    for qt in range(2):
        for t in range(8):
            d = O + (qt * 8 + t) * 4
            a.e(f'v_mfma_f32_16x16x32_bf16 {vr(d,4)}, {vr(V+4*t,4)}, {vr(P+6*qt,4)}, 0')
        if qt == 0: allred('v_add_f32', T, T + 1)
        for t in range(8):
            d = O + (qt * 8 + t) * 4
            Bm = vr(P + 6 * qt + 4, 2) if t % 2 == 0 else vr(T + 4 + 2 * qt, 2)
            a.e(f'v_mfma_f32_16x16x16_bf16 {vr(d,4)}, {vr(VM+(t&~1),2)}, {Bm}, {vr(d,4)}')
        if qt == 0:
            a.e(f'v_rcp_f32 v{T}, v{T}\nv_rcp_f32 v{T+1}, v{T+1}\ns_nop 0\nv_mul_f32 v{T}, v{T}, v{G}\nv_mul_f32 v{T+1}, v{T+1}, v{G+1}')
    for qt in range(2):
        for kp in range(4):
            d = O + (qt * 8 + 2 * kp) * 4
            if qt == 1 and kp == 3: a.e('s_nop 1')
            for i in range(8): a.e(f'v_mul_f32 v{d+i}, v{d+i}, v{T+qt}')
            for i in range(4): a.e(f'v_cvt_pk_bf16_f32 v{d+i}, v{d+2*i}, v{d+2*i+1}')
            a.e(f'global_store_dwordx4 v{L16}, {vr(d,4)}, s[{30+2*qt}:{31+2*qt}] offset:{1024*kp} {st}')
    return end

W4_LRED = 131072
def w4_load_weights(a):
    lane_id(a, 1)
    a.e('v_lshrrev_b32 v2, 4, v1\nv_lshrrev_b32 v3, 2, v1\nv_and_b32 v3, 3, v3\nv_and_b32 v4, 3, v1\nv_lshlrev_b32 v4, 4, v4')
    a.e('v_lshlrev_b32 v5, 15, v2\nv_lshl_add_u32 v5, v3, 13, v5\nv_add_u32 v5, v5, v4')
    a.e('v_lshlrev_b32 v6, 13, v2\nv_lshl_add_u32 v6, v3, 10, v6\nv_add_u32 v6, v6, v4')
    a.e(f's_lshl_b32 s{sT0}, s{sWave}, 15\nv_lshlrev_b32 v7, 8, v2\nv_lshl_add_u32 v7, v3, 6, v7\nv_lshrrev_b32 v8, 1, v4\nv_add3_u32 v7, v7, v8, s{sT0}')
    a.e(f's_lshl_b32 s{sT0}, s26, 6'); add64(a, 28, sWo, sT0); add64(a, 30, sWob, sT0)
    a.e(f's_mul_i32 s32, s{sWave}, 36')
    for c0 in range(0, 36, 12):
        for kl in range(c0, c0 + 12):
            a.e(f's_add_u32 s33, s32, {kl}\ns_lshr_b32 s34, s33, 2\ns_lshl_b32 s34, s34, 17\ns_and_b32 s35, s33, 3\ns_lshl_b32 s35, s35, 11\ns_add_u32 s34, s34, s35')
            a.e(f's_sub_u32 s35, s33, 128\ns_lshl_b32 s35, s35, 15\ns_cmp_lt_u32 s33, 128\ns_cselect_b32 s34, s34, s35\ns_cselect_b32 s36, s28, s30\ns_cselect_b32 s37, s29, s31\ns_cselect_b32 s35, 1, 4\ns_cselect_b64 vcc, -1, 0')
            a.e(f's_lshl_b32 s35, s35, 10\ns_add_u32 s36, s36, s34\ns_addc_u32 s37, s37, 0\ns_add_u32 s38, s36, s35\ns_addc_u32 s39, s37, 0\nv_cndmask_b32 v9, v6, v5, vcc')
            a.e(f's_lshl_b32 s34, s{sWave}, 15\ns_add_u32 s34, s34, {(kl-c0)*2048}\ns_mov_b32 m0, s34\ns_add_u32 s34, s34, 1024')
            a.e('global_load_lds_dwordx4 v9, s[36:37]\ns_mov_b32 m0, s34\ns_nop 0\nglobal_load_lds_dwordx4 v9, s[38:39]')
        a.e('s_waitcnt vmcnt(0)')
        for kl in range(c0, c0 + 12):
            for tl in range(2):
                for hf in range(2):
                    i = (kl * 2 + tl) * 4 + hf * 2
                    dst = ar(i, 2) if i < 256 else vr(224 + i - 256, 2)
                    a.e(f'ds_read_b64_tr_b16 {dst}, v7 offset:{(kl-c0)*2048+hf*1024+tl*32}')
            if kl % 3 == 2: a.e('s_waitcnt lgkmcnt(4)')
        a.e('s_waitcnt lgkmcnt(0)')

def w4_consts(a):
    lane_id(a, 4)
    a.e(f'v_lshlrev_b32 v0, 4, v4\ns_lshl_b32 s{sT0}, s{sWave}, 11\ns_add_u32 s{sT0}, s{sT0}, {W4_LRED}\nv_add_u32 v1, s{sT0}, v0')
    a.e(f's_and_b32 s{sT1}, s{sWave}, 1\ns_lshr_b32 s{sT2}, s{sWave}, 1\ns_lshl_b32 s{sT0}, s{sT1}, 10\ns_lshl_b32 s{sT3}, s{sT2}, 3\ns_add_u32 s{sT0}, s{sT0}, s{sT3}\ns_add_u32 s{sT0}, s{sT0}, {W4_LRED}\nv_add_u32 v2, s{sT0}, v0')
    a.e(f'v_and_b32 v5, 15, v4\nv_lshrrev_b32 v6, 4, v4\nv_lshlrev_b32 v5, 10, v5\nv_lshl_add_u32 v3, v6, 3, v5')
    a.e(f's_lshl_b32 s{sT1}, s{sT1}, 5\ns_lshl_b32 s{sT2}, s{sT2}, 2\ns_add_u32 s{sT0}, s{sT1}, s{sT2}\ns_lshl_b32 s{sT1}, s26, 6\ns_add_u32 s{sT0}, s{sT0}, s{sT1}\nv_add_u32 v3, s{sT0}, v3')

def gen_w4_tile(a, ld=''):
    ACC = 8; FR = 32
    a.e(f's_mul_i32 s{sT0}, s27, {144*1024}\ns_mul_i32 s{sT1}, s{sWave}, {36*1024}\ns_add_u32 s{sT0}, s{sT0}, s{sT1}\ns_add_u32 s{sT0}, s{sT0}, {WS_O+4096}')
    add64(a, 28, sWs, sT0)
    for kl in range(36):
        if kl % 8 == 0 and kl > 0: add64(a, 28, 28, imm=8192)
        a.e(f'global_load_dwordx4 {vr(FR+4*kl,4)}, v0, s[28:29] offset:{(kl%8)*1024-4096} {ld}')
    a.e(f's_lshl_b32 s{sT0}, s27, 14'); add64(a, 28, sOut, sT0)
    for kl in range(36):
        a.e(f's_waitcnt vmcnt({35-kl})')
        for tl in range(2):
            i = (kl * 2 + tl) * 4
            W = ar(i, 4) if i < 256 else vr(224 + i - 256, 4)
            d = ACC + tl * 4
            a.e(f'v_mfma_f32_16x16x32_bf16 {vr(d,4)}, {W}, {vr(FR+4*kl,4)}, {"0" if kl==0 else vr(d,4)}')
    a.e('s_nop 6')
    for q in range(2): a.e(f'ds_write_b128 v1, {vr(ACC+4*q,4)} offset:{1024*q}')
    a.e('s_waitcnt lgkmcnt(0)\ns_barrier')
    for q in range(4): a.e(f'ds_read_b64 {vr(ACC+2*q,2)}, v2 offset:{2048*q}')
    a.e('s_waitcnt lgkmcnt(0)')
    for i in range(2):
        a.e(f'v_add_f32 v{ACC+i}, v{ACC+i}, v{ACC+2+i}\nv_add_f32 v{ACC+4+i}, v{ACC+4+i}, v{ACC+6+i}')
    for i in range(2): a.e(f'v_add_f32 v{ACC+i}, v{ACC+i}, v{ACC+4+i}')
    a.e(f'v_cvt_pk_bf16_f32 v{ACC}, v{ACC}, v{ACC+1}')
    a.e(f'global_store_dword v3, v{ACC}, s[28:29]')

def w4_frag_io(a, store):
    lane_id(a, 1)
    a.e(f'v_lshlrev_b32 v1, 4, v1\ns_lshl_b32 s{sT0}, s26, 2\ns_add_u32 s{sT0}, s{sT0}, s{sWave}\ns_mul_i32 s{sT0}, s{sT0}, {72*1024}\ns_add_u32 s{sT0}, s{sT0}, {WS_WF+4096}')
    add64(a, 28, sWs, sT0)
    for f in range(72):
        if f % 8 == 0 and f > 0: add64(a, 28, 28, imm=8192)
        R = ar(4 * f, 4) if f < 64 else vr(224 + 4 * (f - 64), 4)
        if store: a.e(f'global_store_dwordx4 v1, {R}, s[28:29] offset:{(f%8)*1024-4096} sc1')
        else: a.e(f'global_load_dwordx4 {R}, v1, s[28:29] offset:{(f%8)*1024-4096} sc1')
        if f == 40: a.e('s_waitcnt vmcnt(20)')
    a.e('s_waitcnt vmcnt(0)')

def w4_reorder(a, lab):
    RP = 1056
    lane_id(a, 1)
    a.e('v_lshlrev_b32 v2, 4, v1\nv_lshrrev_b32 v3, 2, v1\nv_and_b32 v4, 3, v1')
    a.e(f's_mul_i32 s30, s{sWave}, {32*RP}\nv_mul_u32_u24 v3, {RP}, v3\nv_lshlrev_b32 v4, 3, v4\nv_add3_u32 v3, v3, v4, s30')
    a.label(lab)
    a.e('s_lshr_b32 s31, s26, 2\ns_lshl_b32 s31, s31, 17\ns_and_b32 s32, s26, 3\ns_lshl_b32 s32, s32, 11\ns_add_u32 s31, s31, s32\ns_sub_u32 s32, s26, 128\ns_lshl_b32 s32, s32, 15')
    a.e(f's_cmp_lt_u32 s26, 128\ns_cselect_b32 s31, s31, s32\ns_cselect_b32 s34, s{sWo}, s{sWob}\ns_cselect_b32 s35, s{sWo+1}, s{sWob+1}\ns_cselect_b32 s36, 1, 4\ns_cselect_b32 s37, 32, 8\ns_cselect_b32 s38, 8, 1')
    a.e('s_add_u32 s34, s34, s31\ns_addc_u32 s35, s35, 0\ns_lshl_b32 s36, s36, 10\ns_lshl_b32 s37, s37, 10\ns_lshl_b32 s38, s38, 10\ns_mov_b32 m0, s30')
    for p in range(32):
        t, gb, r = p >> 4, (p >> 2) & 3, p & 3
        a.e(f's_mul_i32 s39, s36, {t}\ns_mul_i32 s40, s37, {gb}\ns_add_u32 s39, s39, s40\ns_mul_i32 s40, s38, {r}\ns_add_u32 s39, s39, s40\ns_add_u32 s40, s34, s39\ns_addc_u32 s41, s35, 0')
        a.e(f'global_load_lds_dwordx4 v2, s[40:41]\ns_add_u32 s39, m0, {RP}\ns_mov_b32 m0, s39')
    a.e(f's_mul_i32 s39, s26, 1821\ns_lshr_b32 s39, s39, 16\ns_mul_i32 s40, s39, 36\ns_sub_u32 s40, s26, s40\ns_mul_i32 s39, s39, 72\ns_lshl_b32 s40, s40, 1\ns_add_u32 s39, s39, s40\ns_lshl_b32 s39, s39, 10\ns_add_u32 s39, s39, {WS_WF}')
    add64(a, 40, sWs, 39)
    a.e('s_waitcnt vmcnt(0)')
    for cb in range(16):
        for tl in range(2):
            for hf in range(2):
                a.e(f'ds_read_b64_tr_b16 {vr(8+(cb*2+tl)*4+hf*2,2)}, v3 offset:{hf*16*RP+cb*64+tl*32}')
        if cb % 3 == 2: a.e('s_waitcnt lgkmcnt(4)')
    a.e('s_waitcnt lgkmcnt(0)')
    for cb in range(16):
        for tl in range(2): a.e(f'global_store_dwordx4 v2, {vr(8+(cb*2+tl)*4,4)}, s[40:41] offset:{tl*1024} sc1')
        add64(a, 40, 40, imm=4 * 72 * 1024)
    a.e(f's_add_u32 s26, s26, 32\ns_cmp_lt_u32 s26, 144\ns_cbranch_scc1 {lab}')
```

```python
import sys, json
from gen_work import *
from gen_v1 import NAME, HDR, kstart, kdesc

WSPIN = 3000000
def ticket(a, off, dst, per_wave=False, offreg=None):
    src = f's{offreg}' if offreg is not None else str(off)
    if per_wave:
        a.e(f'v_mov_b32 v{per_wave}, {src}\nv_mov_b32 v{per_wave+1}, 1\ns_mov_b64 exec, 1\nglobal_atomic_add v{per_wave+2}, v{per_wave}, v{per_wave+1}, {sr(sDbg,2)} sc0\ns_mov_b64 exec, -1\ns_waitcnt vmcnt(0)\nv_readfirstlane_b32 s{dst}, v{per_wave+2}\ns_nop 1')
        return
    T = 4
    lab = a.newlabel('tk')
    a.e(f'v_mov_b32 v{T}, {src}\nv_mov_b32 v{T+1}, 1\nv_mov_b32 v{T+2}, {L_MISC}\ns_cmp_lg_u32 s{sWave}, 0\ns_cbranch_scc1 {lab}')
    a.e(f's_mov_b64 exec, 1\nglobal_atomic_add v{T+3}, v{T}, v{T+1}, {sr(sDbg,2)} sc0\ns_waitcnt vmcnt(0)\nds_write_b32 v{T+2}, v{T+3}\ns_mov_b64 exec, -1\ns_waitcnt lgkmcnt(0)')
    a.label(lab)
    a.e(f's_barrier\nds_read_b32 v{T+3}, v{T+2}\ns_waitcnt lgkmcnt(0)\nv_readfirstlane_b32 s{dst}, v{T+3}\ns_barrier')

def signal(a, base, off):
    a.e(f'v_mov_b32 v4, {off}\nv_mov_b32 v5, 1\ns_cmp_eq_u32 s{sWave}, 0\ns_cselect_b64 exec, 1, 0\nglobal_atomic_add v4, v5, {sr(base,2)}\ns_mov_b64 exec, -1')

def wait_ge(a, base, off, val, t=4, wg=True, sleep=4, valreg=None, offreg=None, soft=None):
    lab = a.newlabel('wt'); done = a.newlabel('wd')
    a.e(f'v_mov_b32 v{t}, {("s"+str(offreg)) if offreg is not None else off}\ns_mov_b32 s{sSpin}, 0')
    if wg: a.e(f's_cmp_lg_u32 s{sWave}, 0\ns_cbranch_scc1 {done}')
    a.label(lab)
    a.e(f'global_load_dword v{t+1}, v{t}, {sr(base,2)} sc1\ns_add_u32 s{sSpin}, s{sSpin}, 1\ns_cmp_gt_u32 s{sSpin}, {soft or WSPIN}\ns_cbranch_scc1 {done if soft else "CH_EXIT"}')
    a.e(f's_waitcnt vmcnt(0)\nv_readfirstlane_b32 s{sT0}, v{t+1}\ns_nop 1\ns_cmp_ge_u32 s{sT0}, {("s"+str(valreg)) if valreg is not None else val}\ns_cbranch_scc1 {done}\ns_sleep {sleep}\ns_branch {lab}')
    a.label(done)
    if wg: a.e('s_barrier')

def mark(a, k, o, t=210, cond=None):
    if not o.get('time'): return
    if cond:
        a.e(f's_memrealtime s[92:93]\ns_waitcnt lgkmcnt(0)\ns_sub_u32 s92, s92, s94\nv_mov_b32 v{t}, s92\nv_mov_b32 v{t+1}, s96\n{cond}\ns_cselect_b64 exec, 1, 0\nglobal_store_dword v{t+1}, v{t}, {sr(sWs,2)} offset:{4*k}\ns_mov_b64 exec, -1')
        return
    a.e(f's_memrealtime s[92:93]\ns_waitcnt lgkmcnt(0)\ns_sub_u32 s92, s92, s94\nv_mov_b32 v{t}, s92\nv_mov_b32 v{t+1}, s96\ns_cmp_eq_u32 s{sWave}, 0\ns_cselect_b64 exec, 1, 0\nglobal_store_dword v{t+1}, v{t}, {sr(sWs,2)} offset:{4*k}\ns_mov_b64 exec, -1')

def build(opts=None):
    o = dict(merged=1); o.update(opts or {})
    a = Asm(); kstart(a, NAME + '_kernel')
    a.e('s_cmp_ge_u32 s2, 256\ns_cbranch_scc1 CH_EXIT')
    load_chain_ptrs(a); load_worker_ptrs(a)
    if o.get('time'): a.e('s_memrealtime s[94:95]\ns_lshl_b32 s96, s2, 6\ns_add_u32 s96, s96, 0x1E0000\ns_mov_b32 s97, 0')
    if o.get('sst'): a.e('s_memtime s[98:99]')
    a.e(f's_getreg_b32 s{sXcc}, hwreg(HW_REG_XCC_ID)\ns_and_b32 s{sXcc}, s{sXcc}, 15')
    a.e(f'v_lshrrev_b32 v1, 6, v0\nv_lshlrev_b32 v121, 6, v0\nv_readfirstlane_b32 s{sWave}, v1')
    a.e(f's_mov_b32 s{sMode}, 0\ns_cmp_eq_u32 s{sXcc}, {o.get("pref",0)}\ns_cbranch_scc0 WORK')
    a.label('TAKE')
    chain_preload(a)
    a.e('s_getpc_b64 s[52:53]')
    a.label('PT_PC')
    a.e('s_add_u32 s52, s52, CHAIN-PT_PC\ns_addc_u32 s53, s53, 0\nglobal_load_dword v120, v121, s[52:53]')
    a.e('s_waitcnt lgkmcnt(0)')
    if o.get('sst'): a.e('s_mov_b32 s3, s98')
    a.e(f'v_mov_b32 v122, 0\nv_mov_b32 v123, 1\nv_mov_b32 v125, {L_MISC}')
    a.e(f's_cmp_lg_u32 s{sWave}, 0\ns_cbranch_scc1 TK3')
    a.e(f's_mov_b64 exec, 1\nglobal_atomic_add v124, v122, v123, {sr(sDbg,2)} sc0\ns_waitcnt vmcnt(0)\nds_write_b32 v125, v124')
    a.e(f's_cmp_eq_u32 s{sMode}, 0\ns_cbranch_scc1 TK4\nv_mov_b32 v122, 4\nglobal_atomic_or v122, v123, {sr(sDbg,2)}\ns_waitcnt vmcnt(0)')
    a.label('TK4')
    a.e('s_mov_b64 exec, -1\ns_waitcnt lgkmcnt(0)')
    a.label('TK3')
    a.e(f's_barrier\nds_read_b32 v124, v125\ns_waitcnt lgkmcnt(0)\nv_readfirstlane_b32 s{sHead}, v124\ns_barrier\ns_cmp_ge_u32 s{sHead}, 32\ns_cbranch_scc0 CHAIN')
    a.e(f's_waitcnt vmcnt(0)\ns_cmp_eq_u32 s{sMode}, 0\ns_cbranch_scc0 STAFFED')
    a.label('WORK')
    a.e('s_waitcnt lgkmcnt(0)')
    if o.get('xpf', 0):
        lane_id(a, 1)
        a.e(f's_lshr_b32 s{sT0}, s2, 3\ns_and_b32 s{sT0}, s{sT0}, 31\ns_lshl_b32 s{sT0}, s{sT0}, 16\ns_lshl_b32 s{sT1}, s{sWave}, 14\ns_add_u32 s{sT0}, s{sT0}, s{sT1}\nv_lshlrev_b32 v1, 7, v1\nv_add_u32 v1, s{sT0}, v1\nv_add_u32 v2, 8192, v1')
        a.e(f'global_load_dword v220, v1, {sr(sX,2)}\nglobal_load_dword v221, v2, {sr(sX,2)}')
    add64(a, 84, sWs, imm=WS_FL)
    a.label('PH1')
    ticket(a, DB_Q1, 26)
    a.e('s_cmp_ge_u32 s26, 224\ns_cbranch_scc1 PH1_END')
    a.e('s_cmp_lg_u32 s26, 0\ns_cbranch_scc1 PH1_NOINIT')
    lane_id(a, 1)
    a.e(f'v_lshlrev_b32 v1, 4, v1\ns_lshl_b32 s{sT0}, s{sWave}, 12\nv_add_u32 v1, s{sT0}, v1\nv_mov_b32 v8, 0\nv_mov_b32 v9, 0\nv_mov_b32 v10, 0\nv_mov_b32 v11, 0')
    for k in range(4): a.e(f'global_store_dwordx4 v1, v[8:11], s[84:85] offset:{1024*k} sc1')
    a.e('s_waitcnt vmcnt(0)\ns_barrier')
    signal(a, sDbg, DB_INIT)
    a.label('PH1_NOINIT')
    a.e('s_cmp_ge_u32 s26, 216\ns_cbranch_scc1 PH1_GATE')
    if o.get('hold', 0):
        a.e('s_cmp_lt_u32 s26, 128\ns_cbranch_scc1 PH1_GO')
        wait_ge(a, sDbg, DB_R2, 32, sleep=8, soft=64)
        a.e('s_waitcnt vmcnt(0)')
        a.label('PH1_GO')
    a.e(f's_lshr_b32 s{sT0}, s26, 1\ns_and_b32 s{sT1}, s{sT0}, 31\ns_lshl_b32 s{sT1}, s{sT1}, 7\ns_lshr_b32 s{sT0}, s{sT0}, 5\ns_lshl_b32 s{sT2}, s{sT0}, 3\ns_add_u32 s{sT1}, s{sT1}, s{sT2}\ns_and_b32 s{sT2}, s26, 1\ns_lshl_b32 s{sT2}, s{sT2}, 2\ns_add_u32 s{sT1}, s{sT1}, s{sT2}')
    a.e(f'v_mov_b32 v26, s{sT1}\ns_cmp_lt_u32 s{sT0}, 2\ns_cselect_b32 s86, 1, 0\ns_cmp_eq_u32 s{sWave}, 0\ns_cselect_b32 s86, s86, 0\ns_mov_b32 s87, 0')
    def publish(a, sI):
        a.e(f's_sub_u32 s{sT1}, s{sI}, {o.get("nb",4)-2}\ns_max_i32 s{sT1}, s{sT1}, 0\nv_mov_b32 v27, s{sT1}\ns_mov_b64 exec, s[86:87]\nglobal_store_dword v26, v27, s[84:85] sc1\ns_mov_b64 exec, -1')
    def preloop(a):
        wait_ge(a, sDbg, DB_INIT, 1, t=28, wg=False, sleep=2)
        mark(a, 10, o)
        if o.get('time'): a.e('s_memtime s[98:99]\ns_waitcnt lgkmcnt(0)')
    gen_w1(a, o.get('w1st', 'sc1'), publish if not o.get('nopub') else None, preloop=preloop, NB=o.get('nb', 4), plainT=o.get('plain', 1), PF=o.get('pf', 0))
    if o.get('plain', 1):
        a.e(f's_cmp_lt_u32 s26, 128\ns_cbranch_scc1 PH1_REL\ns_cmp_lg_u32 s{sWave}, 0\ns_cbranch_scc1 PH1_REL\nbuffer_wbl2 sc1\ns_waitcnt vmcnt(0)')
        a.label('PH1_REL')
    a.e('v_mov_b32 v27, 32\ns_mov_b64 exec, s[86:87]\nglobal_store_dword v26, v27, s[84:85] sc1\ns_mov_b64 exec, -1')
    a.e('s_branch PH1_DONE')
    a.label('PH1_GATE')
    a.e(f's_sub_u32 s26, s26, 216\ns_lshl_b32 s26, s26, 4\ns_lshl_b32 s{sT0}, s{sWave}, 2\ns_add_u32 s26, s26, s{sT0}\ns_add_u32 s43, s26, 4')
    a.label('PH1_GL')
    gen_gate(a, 'sc1')
    a.e('s_add_u32 s26, s26, 1\ns_cmp_lt_u32 s26, s43\ns_cbranch_scc1 PH1_GL')
    a.e('s_waitcnt vmcnt(0)\ns_barrier')
    signal(a, sDbg, DB_D1); signal(a, sDbg, DB_D1B)
    a.e('s_sub_u32 s26, s26, 1\ns_lshr_b32 s26, s26, 2')
    w4_reorder(a, 'PH1_WL')
    a.e('s_waitcnt vmcnt(0)\ns_barrier')
    signal(a, sDbg, DB_DW)
    mark(a, 14, o)
    a.e('s_branch PH1')
    a.label('PH1_DONE')
    if o.get('time'):
        a.e(f'v_mov_b32 v210, s26\nv_mov_b32 v211, s96\nglobal_store_dword v211, v210, {sr(sWs,2)} offset:20')
        mark(a, 15, o)
        a.e(f's_memtime s[100:101]\ns_waitcnt lgkmcnt(0)\ns_sub_u32 s100, s100, s98\nv_mov_b32 v210, s100\nglobal_store_dword v211, v210, {sr(sWs,2)} offset:36')
    signal(a, sDbg, DB_D1)
    a.e('s_cmp_lt_u32 s26, 192\ns_cbranch_scc1 PH1')
    signal(a, sDbg, DB_D1B)
    a.e('s_branch PH1')
    a.label('PH1_END')
    mark(a, 0, o)
    a.e(f'v_mov_b32 v125, {L_MISC}\nv_mov_b32 v2, 0\ns_mov_b32 s{sSpin}, 0\ns_mov_b32 s44, 0')
    a.e(f's_cmp_lg_u32 s{sWave}, 0\ns_cbranch_scc1 ST_DEC')
    a.label('ST_POLL')
    a.e(f'global_load_dword v3, v2, {sr(sDbg,2)} sc1\ns_waitcnt vmcnt(0)\nv_readfirstlane_b32 s{sT0}, v3\ns_nop 1\ns_cmp_ge_u32 s{sT0}, 32\ns_cbranch_scc1 ST_WR')
    a.e(f's_sleep 8\ns_add_u32 s{sSpin}, s{sSpin}, 1\ns_cmp_lt_u32 s{sSpin}, 100\ns_cbranch_scc1 ST_POLL\ns_mov_b32 s44, 1')
    a.label('ST_WR')
    a.e('v_mov_b32 v3, s44\nds_write_b32 v125, v3 offset:4\ns_waitcnt lgkmcnt(0)')
    a.label('ST_DEC')
    a.e(f's_barrier\nds_read_b32 v3, v125 offset:4\ns_waitcnt lgkmcnt(0)\nv_readfirstlane_b32 s44, v3\ns_barrier\ns_cmp_eq_u32 s44, 0\ns_cbranch_scc1 STAFFED')
    lane_id(a, 0)
    a.e(f's_mov_b32 s{sMode}, 1\ns_lshl_b32 s{sT0}, s{sWave}, 6\nv_add_u32 v0, s{sT0}, v0\nv_lshlrev_b32 v121, 6, v0\ns_branch TAKE')
    a.label('STAFFED')
    wait_ge(a, sDbg, DB_D1B, 32)
    mark(a, 1, o)
    a.label('PH2')
    ticket(a, DB_Q2, 43)
    a.e('s_cmp_ge_u32 s43, 224\ns_cbranch_scc1 PH2_END')
    a.e(f's_lshl_b32 s43, s43, 2\ns_add_u32 s43, s43, s{sWave}')
    a.label('PH2_L')
    a.e('s_mov_b32 s26, s43')
    gen_battn(a, 'sc1', 'sc1')
    a.e('s_add_u32 s43, s43, 896\ns_cmp_lt_u32 s43, 2048\ns_cbranch_scc1 PH2_L')
    a.e('s_waitcnt vmcnt(0)\ns_barrier')
    signal(a, sDbg, DB_D2)
    a.e('s_branch PH2')
    a.label('PH2_END')
    mark(a, 2, o)
    NW3 = o.get('nw3', 48); NS4 = o.get('ns4', 8)
    ticket(a, DB_Q3, 45)
    a.e(f's_cmp_lt_u32 s45, 16\ns_cbranch_scc1 ROLE4\ns_cmp_ge_u32 s45, {NW3+16*NS4}\ns_cbranch_scc1 CH_EXIT\ns_cmp_ge_u32 s45, {16+NW3}\ns_cbranch_scc1 ROLE4')
    a.label('ROLE3')
    wait_ge(a, sDbg, DB_D1, 224)
    w3_consts(a, 0)
    a.e('s_mov_b32 s27, 0')
    add64(a, 46, sWs, imm=WS_FL)
    a.e('s_mov_b64 s[44:45], 0\nv_mov_b32 v203, 0')
    a.label('W3_L')
    ticket(a, DB_Q3T, 28, per_wave=200)
    a.e('s_mov_b64 exec, s[44:45]\nglobal_atomic_add v203, v201, s[46:47]\ns_mov_b64 exec, -1')
    mark(a, 12, o, 204, 's_cmp_eq_u32 s27, 63')
    a.e('s_cmp_ge_u32 s28, 2048\ns_cbranch_scc1 CH_EXIT\ns_lshr_b32 s27, s28, 5\ns_and_b32 s28, s28, 31')
    def w3wait(a):
        a.e(f's_lshl_b32 s48, s28, 7\ns_add_u32 s48, s48, {FL_PROG}\ns_add_u32 s49, s27, 1')
        wait_ge(a, 46, 0, 0, t=200, wg=False, sleep=o.get('sl3', 2), valreg=49, offreg=48)
        mark(a, 11, o, 204, 's_cmp_eq_u32 s27, 63')
    gen_w3(a, 0, 'sc1', 'sc1', w3wait)
    a.e(f's_lshl_b32 s48, s27, 7\ns_add_u32 s48, s48, {FL_CNT}\nv_mov_b32 v203, s48\ns_mov_b64 s[44:45], 1')
    a.e('s_branch W3_L')
    a.label('ROLE4')
    a.e('s_and_b32 s26, s45, 15')
    wait_ge(a, sDbg, DB_DW, 8)
    w4_frag_io(a, False)
    w4_consts(a)
    add64(a, 46, sWs, imm=WS_FL)
    wait_ge(a, sDbg, DB_D2, 224)
    mark(a, 3, o, 20)
    a.e(f's_lshl_b32 s44, s26, 2\ns_add_u32 s44, s44, {DB_Q4}')
    a.label('W4_L')
    ticket(a, 0, 27, offreg=44)
    a.e('s_cmp_ge_u32 s27, 128\ns_cbranch_scc1 W4_END')
    a.e(f's_lshr_b32 s48, s27, 1\ns_lshl_b32 s48, s48, 7\ns_add_u32 s48, s48, {FL_CNT}')
    wait_ge(a, 46, 0, 32, offreg=48, sleep=o.get('sl4', 2))
    mark(a, 13, o, 20, 's_cmp_ge_u32 s27, 126')
    gen_w4_tile(a, 'sc1')
    mark(a, 14, o, 20, 's_cmp_ge_u32 s27, 126')
    a.e('s_branch W4_L')
    a.label('W4_END')
    mark(a, 4, o, 20)
    a.e('s_branch CH_EXIT')
    o2 = dict(o); o2.pop('time', None)
    if o.get('time'): o2['mark'] = lambda a, k: mark(a, k, o, 84)
    gen_chain_body(a, 'sc1', o2)
    a.label('CH_DONE')
    chain_finish(a)
    mark(a, 7, o, 84)
    if o.get('stamps') or o.get('sst'):
        a.e(f's_memtime s[94:95]\ns_waitcnt lgkmcnt(0)\ns_sub_u32 s94, s94, s97')
        a.e(f's_lshl_b32 s{sT0}, s{sR}, 7\ns_add_u32 s{sT0}, s{sT0}, 0x1F0000'); add64(a, sMld, sWs, sT0)
        a.e(f'v_mov_b32 v20, {L_MISC}\ns_lshl_b32 s{sT0}, s{sWave}, 6\nv_add_u32 v20, s{sT0}, v20')
        a.e('ds_read_b128 v[28:31], v20 offset:64\nds_read_b128 v[32:35], v20 offset:80\nds_read_b128 v[36:39], v20 offset:96\ns_waitcnt lgkmcnt(0)')
        a.e('v_mov_b32 v20, 0\nv_mov_b32 v24, s94\nv_mov_b32 v25, 0\nv_mov_b32 v26, 1\nv_mov_b32 v27, 0\nv_mov_b32 v40, s100\nv_mov_b32 v41, s101')
        a.e(f'global_store_dwordx4 v20, v[24:27], {sr(sMld,2)}\nglobal_store_dwordx4 v20, v[28:31], {sr(sMld,2)} offset:16\nglobal_store_dwordx4 v20, v[32:35], {sr(sMld,2)} offset:32\nglobal_store_dwordx4 v20, v[36:39], {sr(sMld,2)} offset:48\nglobal_store_dwordx2 v20, v[40:41], {sr(sMld,2)} offset:64')
    if o.get('time'): a.e(f'v_mov_b32 v84, s97\nv_mov_b32 v85, s96\nglobal_store_dword v85, v84, {sr(sWs,2)} offset:32\nv_mov_b32 v84, s100\nglobal_store_dword v85, v84, {sr(sWs,2)} offset:36\nv_mov_b32 v84, s101\nglobal_store_dword v85, v84, {sr(sWs,2)} offset:40')
    a.label('CH_ABORT'); a.label('CH_EXIT')
    a.e('s_endpgm')
    probs = check(a.lines, 'k')
    t = Asm(); emit_table(t, 'CH_TABLE', chain_table())
    txt = HDR + f'; @launch grid=(256,1,1) block=(256,1,1) lds={LDS_TOTAL}\n'
    txt += '.amdgcn_target "amdgcn-amd-amdhsa--gfx950"\n.text\n' + a.text() + t.text()
    txt += '.section .rodata,"a"\n' + kdesc(NAME + '_kernel', 512, 256)
    return txt, probs
if __name__ == '__main__':
    opts = json.loads(sys.argv[2]) if len(sys.argv) > 2 else {}
    txt, probs = build(opts)
    for p in probs: print(p)
    out = sys.argv[1] if len(sys.argv) > 1 else 'cdna_kernels/' + NAME + '.s'
    open(out, 'w').write(txt)
    print('written', out, len(txt))
```
